```python
import torch

def _softmax(x, axis=-1):
    return torch.softmax(x, dim=axis)
def _gelu(x):
    return torch.nn.functional.gelu(x, approximate="tanh")
def _silu(x):
    return torch.nn.functional.silu(x)
def _sigmoid(x):
    return torch.sigmoid(x)
def _layernorm(x, axis=-1, eps=1e-5):
    m = x.mean(dim=axis, keepdim=True)
    v = x.var(dim=axis, keepdim=True, unbiased=False)
    return (x - m) / torch.sqrt(v + eps)
def _scatter_add(tgt, idx, src, axis=0):
    return tgt.clone().index_add_(axis, idx, src)
def _segment_sum(src, seg, n):
    out = torch.zeros((n,) + src.shape[1:], dtype=src.dtype)
    return out.index_add_(0, seg, src)
def _pad(x, pw):
    flat = tuple(v for pair in reversed(pw) for v in pair)
    return torch.nn.functional.pad(x, flat)

kernel_name = 'standalone__sliding_block__prompt'

def setup_inputs():

    _w = (lambda a: (lambda t: t.to(torch.bfloat16) if t.is_floating_point() else t)(torch.as_tensor(a)))
    B, S, D = 1, 2048, 512
    return {
        "x": _w((lambda *s: torch.randn(*s, dtype=torch.bfloat16) * 0.4)(B, S, D)),
        "wqkv": _w((lambda *s: torch.randn(*s, dtype=torch.bfloat16) * 0.4)(D, 3 * D)),
        "wo": _w((lambda *s: torch.randn(*s, dtype=torch.bfloat16) * 0.05)(D, D)),
    }

def reference(x, wqkv, wo):
    B, S, D = x.shape
    H = 32; Dh = D // H; W = 256
    qkv = (lambda x, *d: x.permute(*d))((x @ wqkv).reshape(B, S, 3, H, Dh), 2, 0, 3, 1, 4)
    q, k, v = qkv[0], qkv[1], qkv[2]
    scores = torch.einsum("bhqd,bhkd->bhqk", q, k) * (Dh ** -0.5)
    idx = torch.arange(S)
    mask = (idx[:, None] - idx[None, :] >= 0) & (idx[:, None] - idx[None, :] < W)
    scores = torch.where(mask[None, None], scores, -1e9)
    p = _softmax(scores, axis=-1)
    o = torch.einsum("bhqk,bhkd->bhqd", p, v)
    return (lambda x, *d: x.permute(*d))(o, 0, 2, 1, 3).reshape(B, S, D) @ wo
```

```python
import sys

OUT = sys.argv[1] if len(sys.argv) > 1 else "standalone__sliding_block__prompt.s"

MB = 1 << 20
WS_Q, WS_K, WS_V, WS_O = 0, 2 * MB, 4 * MB, 6 * MB
WS_BYTES = 8 * MB


class Asm:
    def __init__(self):
        self.lines = []

    def __call__(self, s):
        self.lines.append("    " + s)

    def label(self, l):
        self.lines.append(l + ":")

    def raw(self, s):
        self.lines.append(s)

    def text(self):
        return "\n".join(self.lines) + "\n"


def vr(base, n):
    return f"v[{base}:{base + n - 1}]"


def srd(a, d, ptr_lo, nbytes):
    a(f"s_mov_b32 s{d}, s{ptr_lo}")
    a(f"s_and_b32 s{d + 1}, s{ptr_lo + 1}, 0xffff")
    a(f"s_mov_b32 s{d + 2}, {nbytes:#x}")
    a(f"s_mov_b32 s{d + 3}, 0x00020000")


def kernel_head(a, name):
    a.raw(f".globl {name}")
    a.raw(".p2align 8")
    a.raw(f".type {name},@function")
    a.label(name)


def kd(a, name, vgpr, sgpr):
    acc = (vgpr + 3) // 4 * 4
    a.raw(".p2align 6")
    a.raw(f".amdhsa_kernel {name}")
    a.raw(f"  .amdhsa_next_free_vgpr {vgpr}")
    a.raw(f"  .amdhsa_next_free_sgpr {sgpr}")
    a.raw(f"  .amdhsa_accum_offset {acc}")
    a.raw("  .amdhsa_group_segment_fixed_size 0")
    a.raw("  .amdhsa_kernarg_size 48")
    a.raw("  .amdhsa_user_sgpr_count 2")
    a.raw("  .amdhsa_user_sgpr_kernarg_segment_ptr 1")
    a.raw("  .amdhsa_system_sgpr_workgroup_id_x 1")
    a.raw(".end_amdhsa_kernel")


def gen_k1(a):
    name = "qkv_kernel"
    kernel_head(a, name)
    SX, SW, SWS = 12, 16, 20
    a("s_cmp_ge_u32 s2, 256")
    a("s_cbranch_scc1 K1_END")
    a("s_load_dwordx4 s[4:7], s[0:1], 0")
    a("s_load_dwordx2 s[8:9], s[0:1], 40")
    a("s_and_b32 s24, s2, 7")
    a("s_lshr_b32 s25, s2, 3")
    a("s_and_b32 s26, s25, 1")
    a("s_lshl_b32 s24, s24, 1")
    a("s_add_u32 s24, s24, s26")
    a("s_lshr_b32 s25, s25, 1")
    a("v_and_b32 v1, 63, v0")
    a("v_lshrrev_b32 v2, 6, v0")
    a("v_and_b32 v3, 31, v1")
    a("v_lshrrev_b32 v4, 5, v1")
    a("v_readfirstlane_b32 s26, v2")
    a("v_lshlrev_b32 v5, 10, v3")
    a("v_lshl_add_u32 v5, v4, 4, v5")
    a("s_lshl_b32 s27, s25, 7")
    a("s_lshl_b32 s28, s26, 5")
    a("s_add_u32 s27, s27, s28")
    a("s_lshl_b32 s28, s27, 10")
    a("v_lshrrev_b32 v6, 2, v1")
    a("v_mul_u32_u24 v6, 3072, v6")
    a("v_and_b32 v7, 3, v1")
    a("v_lshl_add_u32 v6, v7, 4, v6")
    a("v_lshrrev_b32 v8, 2, v1")
    a("v_and_b32 v8, 3, v8")
    a("v_lshl_add_u32 v8, v4, 3, v8")
    a("v_lshlrev_b32 v8, 6, v8")
    a("v_lshrrev_b32 v9, 4, v1")
    a("v_and_b32 v9, 1, v9")
    a("v_lshl_add_u32 v8, v9, 5, v8")
    a("v_lshl_add_u32 v8, v7, 3, v8")
    a("v_add_u32 v9, 0x8000, v8")
    a("v_add_u32 v10, 0x10000, v8")
    a("v_lshlrev_b32 v11, 5, v3")
    a("v_lshl_add_u32 v11, v4, 4, v11")
    a("v_and_b32 v12, 15, v1")
    a("v_lshlrev_b32 v12, 5, v12")
    a("v_lshl_add_u32 v12, v4, 4, v12")
    a("v_lshrrev_b32 v13, 4, v3")
    a("v_lshl_add_u32 v12, v13, 16, v12")
    a("s_mul_i32 s29, s26, 98304")
    a("s_lshl_b32 s30, s24, 6")
    a("s_add_u32 s29, s29, s30")
    a("s_lshl_b32 s30, s26, 11")
    a("s_waitcnt lgkmcnt(0)")
    srd(a, SX, 4, 2048 * 512 * 2)
    srd(a, SW, 6, 512 * 1536 * 2)
    srd(a, SWS, 8, WS_BYTES)

    A0 = 64
    ACC = 16
    BB = 192
    for j in range(4):
        for kk in range(2):
            for p in range(3):
                kb = 8 * j + kk
                a(f"s_add_u32 s31, s29, {kb * 49152 + p * 1024}")
                a(f"s_add_u32 s32, s30, {p * 32768 + kb * 1024}")
                a("s_mov_b32 m0, s32")
                a("s_nop 0")
                a(f"buffer_load_dwordx4 v6, s[{SW}:{SW + 3}], s31 offen lds")
        for s in range(8 * j, 8 * j + 8):
            a(f"buffer_load_dwordx4 {vr(A0 + 4 * s, 4)}, v5, s[{SX}:{SX + 3}], s28 offen offset:{s * 32}")
    for r in range(48):
        a(f"v_mov_b32 v{ACC + r}, 0")

    def reads(s):
        b = BB + (s % 2) * 12
        for p in range(3):
            a(f"ds_read_b64_tr_b16 {vr(b + 4 * p, 2)}, v{8 + p} offset:{s * 1024}")
            a(f"ds_read_b64_tr_b16 {vr(b + 4 * p + 2, 2)}, v{8 + p} offset:{s * 1024 + 256}")

    for j in range(4):
        a(f"s_waitcnt vmcnt({56 - 14 * (j + 1)})")
        a("s_barrier")
        reads(8 * j)
        for s in range(8 * j, 8 * j + 8):
            if s + 1 < 8 * j + 8:
                reads(s + 1)
                a("s_waitcnt lgkmcnt(6)")
            else:
                a("s_waitcnt lgkmcnt(0)")
            b = BB + (s % 2) * 12
            af = vr(A0 + 4 * s, 4)
            a(f"v_mfma_f32_32x32x16_bf16 {vr(ACC, 16)}, {vr(b, 4)}, {af}, {vr(ACC, 16)}")
            a(f"v_mfma_f32_32x32x16_bf16 {vr(ACC + 16, 16)}, {vr(b + 4, 4)}, {af}, {vr(ACC + 16, 16)}")
            a(f"v_mfma_f32_32x32x16_bf16 {vr(ACC + 32, 16)}, {af}, {vr(b + 8, 4)}, {vr(ACC + 32, 16)}")
    a("s_lshl_b32 s31, s24, 17")
    a("s_lshl_b32 s32, s27, 5")
    a("s_add_u32 s31, s31, s32")
    a("s_add_u32 s32, s31, 65536")
    a(f"s_add_u32 s33, s31, {WS_K}")
    a(f"s_add_u32 s34, s33, 65536")
    a(f"s_add_u32 s35, s31, {WS_V}")
    a("s_nop 7")
    a("s_nop 7")
    T = 192
    for tile, soffs in ((0, (31, 32)), (1, (33, 34))):
        for hd in range(2):
            base = ACC + 16 * tile + 8 * hd
            t = T + 4 * (2 * tile + hd)
            for q in range(4):
                a(f"v_cvt_pk_bf16_f32 v{t + q}, v{base + 2 * q}, v{base + 2 * q + 1}")
            a(f"buffer_store_dwordx4 {vr(t, 4)}, v11, s[{SWS}:{SWS + 3}], s{soffs[hd]} offen")
    for u in range(2):
        base = ACC + 32 + 8 * u
        t = T + 16 + 4 * u
        for q in range(4):
            a(f"v_cvt_pk_bf16_f32 v{t + q}, v{base + 2 * q}, v{base + 2 * q + 1}")
        a(f"buffer_store_dwordx4 {vr(t, 4)}, v12, s[{SWS}:{SWS + 3}], s35 offen offset:{u * 512}")
    a.label("K1_END")
    a("s_endpgm")
    return name, 216, 40


def gen_k2(a):
    name = "attn_kernel"
    kernel_head(a, name)
    SWS = 12
    MK = 16
    a("s_cmp_ge_u32 s2, 512")
    a("s_cbranch_scc1 K2_END")
    a("s_load_dwordx2 s[8:9], s[0:1], 40")
    a("s_and_b32 s50, s2, 7")
    a("s_lshr_b32 s51, s2, 3")
    a("s_and_b32 s52, s51, 3")
    a("s_lshl_b32 s50, s50, 2")
    a("s_add_u32 s50, s50, s52")
    a("s_lshr_b32 s51, s51, 2")
    a("v_and_b32 v1, 63, v0")
    a("v_lshrrev_b32 v2, 6, v0")
    a("v_and_b32 v3, 31, v1")
    a("v_lshrrev_b32 v4, 5, v1")
    a("v_readfirstlane_b32 s52, v2")
    a("v_lshlrev_b32 v5, 5, v3")
    a("v_lshl_add_u32 v5, v4, 4, v5")
    a("s_lshl_b32 s51, s51, 2")
    a("s_add_u32 s51, s51, s52")
    a("s_lshl_b32 s53, s50, 16")
    a("s_lshl_b32 s54, s51, 10")
    a("s_add_u32 s54, s54, s53")
    for i in range(9):
        a(f"s_sub_i32 s55, s51, {8 - i}")
        a("s_max_i32 s55, s55, 0")
        a("s_lshl_b32 s55, s55, 10")
        a("s_add_u32 s55, s55, s53")
        a(f"s_add_u32 s{56 + i}, s55, {WS_K}")
        a(f"s_add_u32 s{66 + i}, s55, {WS_V}")
    a("s_waitcnt lgkmcnt(0)")
    srd(a, SWS, 8, WS_BYTES)
    QF = 8
    KF = 12
    VF = 48
    SA, SB, SC = 120, 136, 152
    PK = 168
    OA = 232
    MP = 12
    korder = [0, 8, 1, 2, 3, 4, 5, 6, 7]
    a(f"buffer_load_dwordx4 {vr(QF, 4)}, v5, s[{SWS}:{SWS + 3}], s54 offen")
    for i in korder:
        a(f"buffer_load_dwordx4 {vr(KF + 4 * i, 4)}, v5, s[{SWS}:{SWS + 3}], s{56 + i} offen")
    a("v_mov_b32 v6, 0x3f803f80")
    for r in range(72):
        a(f"v_mov_b32 v{VF + r}, v6")
    a("s_mov_b32 exec_lo, 0xffff")
    a("s_mov_b32 exec_hi, 0xffff")
    vorder = [8, 0, 1, 2, 3, 4, 5, 6, 7]
    for i in vorder:
        for u in range(2):
            a(f"buffer_load_dwordx4 {vr(VF + 8 * i + 4 * u, 4)}, v5, s[{SWS}:{SWS + 3}], s{66 + i} offen offset:{u * 512}")
    a("s_mov_b64 exec, -1")
    a("v_lshlrev_b32 v6, 2, v4")
    a("v_sub_u32 v6, v3, v6")
    for r in range(16):
        c = 8 * (r // 4) + (r % 4)
        a(f"v_cmp_le_i32 s[{MK + 2 * r}:{MK + 2 * r + 1}], {c}, v6")
    MPK = 248
    a("v_mov_b32 v6, 0xffff")
    a("v_mov_b32 v7, 0xffff0000")
    a("s_nop 1")
    for j in range(8):
        a(f"v_cndmask_b32 v{MPK + j}, 0, v6, s[{MK + 4 * j}:{MK + 4 * j + 1}]")
        a(f"v_cndmask_b32 v{SC + j}, 0, v7, s[{MK + 4 * j + 2}:{MK + 4 * j + 3}]")
    for j in range(8):
        a(f"v_or_b32 v{MPK + j}, v{MPK + j}, v{SC + j}")
    for r in range(16):
        a(f"v_mov_b32 v{OA + r}, 0")
    a("v_mov_b32 v6, 0xff800000")
    a("v_mov_b32 v7, 0xff800000")
    a("s_mov_b32 s48, 0xff80ff80")
    a("s_mov_b32 s49, 0x3eb8aa3b")

    nv = 18

    def mfma_s(dst, i):
        a(f"v_mfma_f32_32x32x16_bf16 {vr(dst, 16)}, {vr(KF + 4 * i, 4)}, {vr(QF, 4)}, 0")

    def proc(src, slot):
        for q in range(8):
            m = 6 + (q & 1)
            a(f"v_max3_f32 v{m}, v{m}, v{src + 2 * q}, v{src + 2 * q + 1}")
        for q in range(8):
            a(f"v_cvt_pk_bf16_f32 v{PK + 8 * slot + q}, v{src + 2 * q}, v{src + 2 * q + 1}")

    a(f"s_waitcnt vmcnt({nv + 7})")
    mfma_s(SA, 0)
    mfma_s(SB, 8)
    a(f"s_waitcnt vmcnt({nv + 6})")
    mfma_s(SC, 1)
    a("s_nop 7")
    a("s_nop 3")
    a("s_cmp_ge_u32 s51, 8")
    a("s_cbranch_scc1 K2_HAVE0")
    for r in range(16):
        a(f"v_mov_b32 v{SA + r}, 0xff800000")
    a.label("K2_HAVE0")
    for r in range(16):
        a(f"v_cndmask_b32 v{SA + r}, v{SA + r}, v{SB + r}, s[{MK + 2 * r}:{MK + 2 * r + 1}]")
    proc(SA, 0)
    bufs = [SC, SB]
    for i in range(1, 8):
        cur = bufs[(i - 1) % 2]
        nxt = bufs[i % 2]
        if i + 1 < 8:
            a(f"s_waitcnt vmcnt({nv + 7 - (i + 1)})")
            mfma_s(nxt, i + 1)
        else:
            a("s_nop 7")
            a("s_nop 3")
        a(f"s_cmp_ge_u32 s51, {8 - i}")
        a(f"s_cbranch_scc1 K2_T{i}_OK")
        for q in range(8):
            a(f"v_mov_b32 v{PK + 8 * i + q}, s48")
        a(f"s_branch K2_T{i}_DONE")
        a.label(f"K2_T{i}_OK")
        if i + 1 < 8:
            pass
        proc(cur, i)
        a.label(f"K2_T{i}_DONE")
    a("v_max_f32 v6, v6, v7")
    a("v_mov_b32 v7, v6")
    a("s_nop 1")
    a("v_permlane32_swap_b32 v6, v7")
    a("s_nop 1")
    a("v_max_f32 v6, v6, v7")
    a("v_cvt_pk_bf16_f32 v6, v6, v6")
    a("v_and_b32 v6, 0xffff0000, v6")
    a("v_mul_f32 v6, s49, v6")
    a("v_sub_f32 v6, 0, v6")
    E = SA
    P = SB
    vdone = 0

    def expo(slot, pdst):
        for q in range(8):
            src = PK + 8 * slot + q
            a(f"v_lshlrev_b32 v{E + 2 * q}, 16, v{src}")
            a(f"v_and_b32 v{E + 2 * q + 1}, 0xffff0000, v{src}")
        for r in range(16):
            a(f"v_fma_f32 v{E + r}, v{E + r}, s49, v6")
        for r in range(16):
            a(f"v_exp_f32 v{E + r}, v{E + r}")
        a("s_nop 0")
        for q in range(8):
            a(f"v_cvt_pk_bf16_f32 v{pdst + q}, v{E + 2 * q}, v{E + 2 * q + 1}")

    def pv(i, psrc):
        for u in range(2):
            a(f"v_mfma_f32_32x32x16_bf16 {vr(OA, 16)}, {vr(VF + 8 * i + 4 * u, 4)}, {vr(psrc + 4 * u, 4)}, {vr(OA, 16)}")

    expo(0, SC)
    for q in range(8):
        a(f"v_and_b32 v{P + q}, v{SC + q}, v{MPK + q}")
        a(f"v_bfi_b32 v{P + 8 + q}, v{MPK + q}, 0, v{SC + q}")
    a("s_waitcnt vmcnt(14)")
    a("s_nop 0")
    pv(8, P)
    pv(0, P + 8)
    pbufs = [SC, SC + 8]
    for i in range(1, 8):
        pb = pbufs[i % 2]
        expo(i, pb)
        a(f"s_waitcnt vmcnt({14 - 2 * i})")
        a("s_nop 0")
        pv(i, pb)
    a("s_nop 7")
    a("s_nop 7")
    a(f"v_rcp_f32 v7, v{OA + 8}")
    a("s_nop 0")
    for r in range(8):
        a(f"v_mul_f32 v{OA + r}, v{OA + r}, v7")
    for q in range(4):
        a(f"v_cvt_pk_bf16_f32 v{SA + q}, v{OA + 2 * q}, v{OA + 2 * q + 1}")
    a("s_lshl_b32 s55, s51, 5")
    a("s_add_u32 s55, s55, s50")
    a("s_lshl_b32 s55, s55, 10")
    a(f"s_add_u32 s55, s55, {WS_O}")
    a(f"buffer_store_dwordx4 {vr(SA, 4)}, v5, s[{SWS}:{SWS + 3}], s55 offen")
    a.label("K2_END")
    a("s_endpgm")
    return name, 256, 80


def gen_k3(a):
    name = "oproj_kernel"
    kernel_head(a, name)
    SW, SWS, SO = 12, 16, 20
    a("s_cmp_ge_u32 s2, 256")
    a("s_cbranch_scc1 K3_END")
    a("s_load_dwordx4 s[4:7], s[0:1], 16")
    a("s_load_dwordx2 s[8:9], s[0:1], 40")
    a("s_and_b32 s24, s2, 7")
    a("s_lshr_b32 s25, s2, 3")
    a("s_and_b32 s26, s25, 3")
    a("s_lshl_b32 s26, s26, 3")
    a("s_add_u32 s24, s24, s26")
    a("s_lshr_b32 s25, s25, 2")
    a("v_and_b32 v1, 63, v0")
    a("v_lshrrev_b32 v2, 6, v0")
    a("v_and_b32 v3, 31, v1")
    a("v_lshrrev_b32 v4, 5, v1")
    a("v_readfirstlane_b32 s26, v2")
    a("v_lshlrev_b32 v5, 5, v3")
    a("v_lshl_add_u32 v5, v4, 4, v5")
    a("s_and_b32 s27, s26, 1")
    a("s_lshr_b32 s28, s26, 1")
    a("s_lshl_b32 s29, s24, 1")
    a("s_add_u32 s29, s29, s27")
    a("s_lshl_b32 s30, s29, 15")
    a(f"s_add_u32 s30, s30, {WS_O}")
    a("v_lshrrev_b32 v6, 2, v1")
    a("v_lshlrev_b32 v6, 10, v6")
    a("v_and_b32 v7, 3, v1")
    a("v_lshl_add_u32 v6, v7, 4, v6")
    a("v_lshrrev_b32 v8, 2, v1")
    a("v_and_b32 v8, 3, v8")
    a("v_lshl_add_u32 v8, v4, 2, v8")
    a("v_lshlrev_b32 v8, 6, v8")
    a("v_lshrrev_b32 v9, 4, v1")
    a("v_and_b32 v9, 1, v9")
    a("v_lshl_add_u32 v8, v9, 5, v8")
    a("v_and_b32 v9, 1, v1")
    a("v_lshl_add_u32 v8, v9, 4, v8")
    a("v_lshrrev_b32 v9, 1, v7")
    a("v_lshl_add_u32 v8, v9, 3, v8")
    a("s_lshl_b32 s31, s28, 15")
    a("v_add_u32 v8, s31, v8")
    a("v_lshlrev_b32 v10, 10, v3")
    a("v_lshl_add_u32 v10, v4, 4, v10")
    a("s_lshl_b32 s31, s29, 15")
    a("s_lshl_b32 s32, s25, 7")
    a("s_add_u32 s31, s31, s32")
    a("s_lshl_b32 s32, s28, 6")
    a("s_add_u32 s31, s31, s32")
    a("s_lshl_b32 s33, s26, 15")
    a("s_lshl_b32 s34, s25, 7")
    a("s_add_u32 s33, s33, s34")
    a("s_lshl_b32 s34, s26, 11")
    a("s_waitcnt lgkmcnt(0)")
    srd(a, SW, 4, 512 * 512 * 2)
    srd(a, SO, 6, 2048 * 512 * 2)
    srd(a, SWS, 8, WS_BYTES)
    A0 = 64
    ACC = 16
    BB = 32
    for j in range(4):
        for kk in range(2):
            for p in range(2):
                kb = 8 * j + kk
                a(f"s_add_u32 s35, s33, {kb * 16384 + p * 64}")
                a(f"s_add_u32 s36, s34, {p * 32768 + kb * 1024}")
                a("s_mov_b32 m0, s36")
                a("s_nop 0")
                a(f"buffer_load_dwordx4 v6, s[{SW}:{SW + 3}], s35 offen lds")
        for s in range(8 * j, 8 * j + 8):
            if s % 4 == 0:
                a(f"s_add_u32 s37, s30, {(s // 4) * 4096}")
            a(f"buffer_load_dwordx4 {vr(A0 + 4 * s, 4)}, v5, s[{SWS}:{SWS + 3}], s37 offen offset:{(s % 4) * 1024}")
    for r in range(16):
        a(f"v_mov_b32 v{ACC + r}, 0")

    def reads(s):
        b = BB + (s % 4) * 4
        a(f"ds_read_b64_tr_b16 {vr(b, 2)}, v8 offset:{s * 1024}")
        a(f"ds_read_b64_tr_b16 {vr(b + 2, 2)}, v8 offset:{s * 1024 + 512}")

    for j in range(4):
        a(f"s_waitcnt vmcnt({48 - 12 * (j + 1)})")
        a("s_barrier")
        for s in range(8 * j, 8 * j + 3):
            reads(s)
        for s in range(8 * j, 8 * j + 8):
            if s + 3 < 8 * j + 8:
                reads(s + 3)
                a("s_waitcnt lgkmcnt(6)")
            else:
                a(f"s_waitcnt lgkmcnt({2 * (8 * j + 7 - s)})")
            b = BB + (s % 4) * 4
            a(f"v_mfma_f32_32x32x16_bf16 {vr(ACC, 16)}, {vr(b, 4)}, {vr(A0 + 4 * s, 4)}, {vr(ACC, 16)}")
    a("s_nop 7")
    a("s_nop 7")
    T = 48
    for u in range(2):
        for q in range(4):
            a(f"v_cvt_pk_bf16_f32 v{T + 4 * u + q}, v{ACC + 8 * u + 2 * q}, v{ACC + 8 * u + 2 * q + 1}")
        a(f"buffer_store_dwordx4 {vr(T + 4 * u, 4)}, v10, s[{SO}:{SO + 3}], s31 offen offset:{u * 32}")
    a.label("K3_END")
    a("s_endpgm")
    return name, 192, 40


def main():
    a = Asm()
    hdr = open("standalone__sliding_block__prompt.s.ref").read().split("\n")
    for line in hdr:
        if line.startswith("; @launch") or not line.startswith(";"):
            break
        a.raw(line)
    a.raw("; @launch kernel=qkv_kernel grid=(256,1,1) block=(256,1,1) lds=98304")
    a.raw("; @launch kernel=attn_kernel grid=(512,1,1) block=(256,1,1) lds=0")
    a.raw("; @launch kernel=oproj_kernel grid=(256,1,1) block=(256,1,1) lds=65536")
    a.raw('.amdgcn_target "amdgcn-amd-amdhsa--gfx950"')
    a.raw(".text")
    ks = [gen_k1(a), gen_k2(a), gen_k3(a)]
    a.raw('.section .rodata,"a"')
    for name, v, s in ks:
        kd(a, name, v, s)
    open(OUT, "w").write(a.text())


main()
```

```python
import sys

OUT = sys.argv[1] if len(sys.argv) > 1 else "standalone__sliding_block__prompt.s"

MB = 1 << 20
WS_Q, WS_K, WS_V, WS_O = 0, 2 * MB, 4 * MB, 6 * MB
WS_BYTES = 8 * MB


import os
DIAG = int(os.environ.get("DIAG", "0"))


class Asm:
    def __init__(self):
        self.lines = []
        self.nst = 0

    def stamp(self):
        if DIAG:
            i = self.nst
            self.nst += 1
            self(f"s_memtime s[{82 + 2 * i}:{83 + 2 * i}]")

    def diag_begin(self):
        if DIAG:
            self.nst = 0
            self("s_memrealtime s[100:101]")
            self.stamp()

    def diag_end(self, kidx, wave_sreg, lab):
        if not DIAG:
            return
        self.stamp()
        self("s_waitcnt vmcnt(0) lgkmcnt(0)")
        self.stamp()
        self("s_memrealtime s[98:99]")
        self("s_load_dwordx2 s[76:77], s[0:1], 40")
        self("s_waitcnt lgkmcnt(0)")
        self(f"s_cmp_lg_u32 s{wave_sreg}, 0")
        self(f"s_cbranch_scc1 {lab}")
        self("s_and_b32 s77, s77, 0xffff")
        self("s_mov_b32 s78, 0x2000000")
        self("s_mov_b32 s79, 0x00020000")
        self("s_lshl_b32 s80, s2, 7")
        self(f"s_add_u32 s80, s80, {16 * MB + kidx * 65536}")
        self("v_mov_b32 v1, 0")
        self("v_mov_b32 v2, s100")
        self("buffer_store_dword v2, v1, s[76:79], s80 offen")
        self("v_mov_b32 v2, s98")
        self("buffer_store_dword v2, v1, s[76:79], s80 offen offset:4")
        for i in range(self.nst):
            self(f"s_sub_u32 s81, s{82 + 2 * i}, s82")
            self("v_mov_b32 v2, s81")
            self(f"buffer_store_dword v2, v1, s[76:79], s80 offen offset:{8 + 4 * i}")

    def __call__(self, s):
        self.lines.append("    " + s)

    def label(self, l):
        self.lines.append(l + ":")

    def raw(self, s):
        self.lines.append(s)

    def text(self):
        return "\n".join(self.lines) + "\n"


def vr(base, n):
    return f"v[{base}:{base + n - 1}]"


def srd(a, d, ptr_lo, nbytes):
    a(f"s_mov_b32 s{d}, s{ptr_lo}")
    a(f"s_and_b32 s{d + 1}, s{ptr_lo + 1}, 0xffff")
    a(f"s_mov_b32 s{d + 2}, {nbytes:#x}")
    a(f"s_mov_b32 s{d + 3}, 0x00020000")


def kernel_head(a, name):
    a.raw(f".globl {name}")
    a.raw(".p2align 8")
    a.raw(f".type {name},@function")
    a.label(name)


def kd(a, name, vgpr, sgpr):
    acc = (vgpr + 3) // 4 * 4
    a.raw(".p2align 6")
    a.raw(f".amdhsa_kernel {name}")
    a.raw(f"  .amdhsa_next_free_vgpr {vgpr}")
    a.raw(f"  .amdhsa_next_free_sgpr {102 if DIAG else sgpr}")
    a.raw(f"  .amdhsa_accum_offset {acc}")
    a.raw("  .amdhsa_group_segment_fixed_size 0")
    a.raw("  .amdhsa_kernarg_size 48")
    a.raw("  .amdhsa_user_sgpr_count 2")
    a.raw("  .amdhsa_user_sgpr_kernarg_segment_ptr 1")
    a.raw("  .amdhsa_system_sgpr_workgroup_id_x 1")
    a.raw(".end_amdhsa_kernel")


def gen_k1(a):
    name = "qkv_kernel"
    kernel_head(a, name)
    SX, SW, SWS = 12, 16, 20
    a("s_cmp_ge_u32 s2, 256")
    a("s_cbranch_scc1 K1_END")
    a.diag_begin()
    a("s_load_dwordx4 s[4:7], s[0:1], 0")
    a("s_load_dwordx2 s[8:9], s[0:1], 40")
    a("s_and_b32 s24, s2, 7")
    a("s_lshr_b32 s25, s2, 3")
    a("v_and_b32 v1, 63, v0")
    a("v_lshrrev_b32 v2, 6, v0")
    a("v_and_b32 v3, 31, v1")
    a("v_lshrrev_b32 v4, 5, v1")
    a("v_readfirstlane_b32 s26, v2")
    a("v_lshrrev_b32 v5, 3, v1")
    a("v_and_b32 v6, 7, v1")
    a("s_and_b32 s27, s26, 1")
    a("s_lshr_b32 s28, s26, 1")
    a("v_lshrrev_b32 v7, 4, v1")
    a("s_lshl_b32 s29, s27, 2")
    a("v_add_u32 v7, s29, v7")
    a("v_xor_b32 v7, v7, v6")
    a("v_lshlrev_b32 v7, 4, v7")
    a("v_lshl_add_u32 v7, v5, 10, v7")
    a("v_lshrrev_b32 v8, 4, v1")
    a("v_and_b32 v8, 1, v8")
    a("v_lshlrev_b32 v8, 2, v8")
    a("v_xor_b32 v8, v8, v6")
    a("v_lshlrev_b32 v8, 4, v8")
    a("v_mul_u32_u24 v9, 3072, v5")
    a("v_add_u32 v8, v8, v9")
    a("s_lshl_b32 s29, s27, 5")
    a("v_add_u32 v9, s29, v3")
    a("v_lshrrev_b32 v10, 1, v9")
    a("v_and_b32 v10, 7, v10")
    a("v_lshlrev_b32 v9, 7, v9")
    for s in range(4):
        a(f"v_add_u32 v11, {2 * s}, v4")
        a("v_xor_b32 v11, v11, v10")
        a(f"v_lshl_add_u32 v{12 + s}, v11, 4, v9")
    a("v_lshrrev_b32 v9, 2, v1")
    a("v_and_b32 v9, 3, v9")
    a("v_lshrrev_b32 v10, 1, v9")
    a("v_xor_b32 v10, s28, v10")
    a("v_lshlrev_b32 v10, 6, v10")
    a("v_lshl_add_u32 v9, v4, 3, v9")
    a("v_lshl_add_u32 v10, v9, 7, v10")
    a("v_lshrrev_b32 v9, 4, v1")
    a("v_and_b32 v9, 1, v9")
    a("v_lshl_add_u32 v10, v9, 5, v10")
    a("v_and_b32 v9, 3, v1")
    a("v_lshl_add_u32 v10, v9, 3, v10")
    a("v_add_u32 v10, 0x8000, v10")
    a("v_add_u32 v11, 0xc000, v10")
    a("v_lshlrev_b32 v5, 5, v3")
    a("v_lshl_add_u32 v5, v4, 4, v5")
    a("v_and_b32 v6, 15, v1")
    a("v_lshlrev_b32 v6, 5, v6")
    a("v_lshl_add_u32 v6, v4, 4, v6")
    a("v_lshrrev_b32 v9, 4, v3")
    a("v_lshl_add_u32 v6, v9, 16, v6")
    a("s_lshl_b32 s29, s25, 16")
    a("s_lshl_b32 s30, s26, 13")
    a("s_add_u32 s29, s29, s30")
    a("s_lshl_b32 s30, s26, 10")
    a("s_mul_i32 s31, s26, 49152")
    a("s_lshl_b32 s32, s24, 7")
    a("s_add_u32 s31, s31, s32")
    a("s_lshl_b32 s32, s26, 11")
    a("s_add_u32 s32, s32, 0x8000")
    a("s_waitcnt lgkmcnt(0)")
    srd(a, SX, 4, 2048 * 512 * 2)
    srd(a, SW, 6, 512 * 1536 * 2)
    srd(a, SWS, 8, WS_BYTES)

    ACC = 16
    FR = 64

    def dma(c):
        b = c % 4
        for i2 in range(2):
            a(f"s_add_u32 s33, s29, {c * 128 + i2 * 32768}")
            a(f"s_add_u32 s34, s30, {b * 8192 + i2 * 4096}")
            a("s_mov_b32 m0, s34")
            a("s_nop 0")
            a(f"buffer_load_dwordx4 v7, s[{SX}:{SX + 3}], s33 offen lds")
        for p in range(3):
            for i2 in range(2):
                a(f"s_add_u32 s33, s31, {c * 64 * 3072 + i2 * 8 * 3072 + p * 1024}")
                a(f"s_add_u32 s34, s32, {b * 24576 + p * 8192 + i2 * 1024}")
                a("s_mov_b32 m0, s34")
                a("s_nop 0")
                a(f"buffer_load_dwordx4 v8, s[{SW}:{SW + 3}], s33 offen lds")

    def reads(c, s):
        b = c % 4
        f = FR + ((4 * c + s) % 2) * 16
        a(f"ds_read_b128 {vr(f, 4)}, v{12 + s} offset:{b * 8192}")
        breg = 10 if b < 2 else 11
        boff = (b % 2) * 24576 + s * 2048
        for p in range(3):
            a(f"ds_read_b64_tr_b16 {vr(f + 4 + 4 * p, 2)}, v{breg} offset:{boff + p * 8192}")
            a(f"ds_read_b64_tr_b16 {vr(f + 6 + 4 * p, 2)}, v{breg} offset:{boff + p * 8192 + 512}")

    for c in range(4):
        dma(c)
    a.stamp()
    for r in range(48):
        a(f"v_mov_b32 v{ACC + r}, 0")
    for c in range(8):
        if c == 0:
            rem = 3
        else:
            rem = min(c + 2, 7) - c
        a(f"s_waitcnt vmcnt({8 * rem})")
        a("s_barrier")
        if c in (0, 1, 4, 7):
            a.stamp()
        reads(c, 0)
        if 1 <= c and c + 3 < 8:
            dma(c + 3)
        for s in range(4):
            if s + 1 < 4:
                reads(c, s + 1)
                a("s_waitcnt lgkmcnt(7)")
            else:
                a("s_waitcnt lgkmcnt(0)")
            f = FR + ((4 * c + s) % 2) * 16
            af = vr(f, 4)
            a(f"v_mfma_f32_32x32x16_bf16 {vr(ACC, 16)}, {vr(f + 4, 4)}, {af}, {vr(ACC, 16)}")
            a(f"v_mfma_f32_32x32x16_bf16 {vr(ACC + 16, 16)}, {vr(f + 8, 4)}, {af}, {vr(ACC + 16, 16)}")
            a(f"v_mfma_f32_32x32x16_bf16 {vr(ACC + 32, 16)}, {af}, {vr(f + 12, 4)}, {vr(ACC + 32, 16)}")
    a("s_lshl_b32 s31, s24, 18")
    a("s_lshl_b32 s32, s28, 17")
    a("s_add_u32 s31, s31, s32")
    a("s_lshl_b32 s32, s25, 11")
    a("s_add_u32 s31, s31, s32")
    a("s_lshl_b32 s32, s27, 10")
    a("s_add_u32 s31, s31, s32")
    a("s_add_u32 s32, s31, 65536")
    a(f"s_add_u32 s33, s31, {WS_K}")
    a(f"s_add_u32 s34, s33, 65536")
    a(f"s_add_u32 s35, s31, {WS_V}")
    a("s_nop 7")
    a("s_nop 3")
    T = 64
    for tile, soffs in ((0, (31, 32)), (1, (33, 34))):
        for hd in range(2):
            base = ACC + 16 * tile + 8 * hd
            t = T + 4 * (2 * tile + hd)
            for q in range(4):
                a(f"v_cvt_pk_bf16_f32 v{t + q}, v{base + 2 * q}, v{base + 2 * q + 1}")
            a(f"buffer_store_dwordx4 {vr(t, 4)}, v5, s[{SWS}:{SWS + 3}], s{soffs[hd]} offen")
    for u in range(2):
        base = ACC + 32 + 8 * u
        t = T + 16 + 4 * u
        for q in range(4):
            a(f"v_cvt_pk_bf16_f32 v{t + q}, v{base + 2 * q}, v{base + 2 * q + 1}")
        a(f"buffer_store_dwordx4 {vr(t, 4)}, v6, s[{SWS}:{SWS + 3}], s35 offen offset:{u * 512}")
    a.diag_end(0, 26, "K1_END")
    a.label("K1_END")
    a("s_endpgm")
    return name, 96, 40


def gen_k2(a):
    name = "attn_kernel"
    kernel_head(a, name)
    SWS = 12
    MK = 16
    a("s_cmp_ge_u32 s2, 256")
    a("s_cbranch_scc1 K2_END")
    a.diag_begin()
    a("s_load_dwordx2 s[8:9], s[0:1], 40")
    a("s_and_b32 s50, s2, 7")
    a("s_lshr_b32 s51, s2, 3")
    a("s_and_b32 s52, s51, 3")
    a("s_lshl_b32 s50, s50, 2")
    a("s_add_u32 s50, s50, s52")
    a("s_lshr_b32 s51, s51, 2")
    a("v_and_b32 v1, 63, v0")
    a("v_lshrrev_b32 v2, 6, v0")
    a("v_and_b32 v3, 31, v1")
    a("v_lshrrev_b32 v4, 5, v1")
    a("v_readfirstlane_b32 s52, v2")
    a("v_lshlrev_b32 v5, 5, v3")
    a("v_lshl_add_u32 v5, v4, 4, v5")
    a("v_lshlrev_b32 v2, 4, v1")
    a("s_lshl_b32 s53, s50, 16")
    a("s_lshl_b32 s56, s51, 3")
    a("s_add_u32 s51, s56, s52")
    a("s_lshl_b32 s54, s51, 10")
    a("s_add_u32 s54, s54, s53")
    a("s_lshl_b32 s57, s52, 1")
    a("s_add_u32 s58, s56, s57")
    a("s_sub_i32 s58, s58, 8")
    a("s_add_i32 s59, s58, 1")
    a("s_max_i32 s58, s58, 0")
    a("s_max_i32 s59, s59, 0")
    a("s_lshl_b32 s58, s58, 10")
    a("s_lshl_b32 s59, s59, 10")
    a("s_add_u32 s58, s58, s53")
    a("s_add_u32 s59, s59, s53")
    a("s_lshl_b32 s57, s57, 10")
    a("s_lshl_b32 s60, s52, 10")
    a("v_add_u32 v6, s60, v5")
    a("s_waitcnt lgkmcnt(0)")
    srd(a, SWS, 8, WS_BYTES)
    QF = 8
    KF = 12
    VF = 48
    SA, SB, SC = 120, 136, 152
    PK = 168
    OA = 232
    MPK = 248
    for (sg, ws, lo) in ((58, WS_K, 0), (59, WS_K, 1024), (58, WS_V, 16384), (59, WS_V, 17408)):
        a(f"s_add_u32 s61, s{sg}, {ws}")
        a(f"s_add_u32 s62, s57, {lo}")
        a("s_mov_b32 m0, s62")
        a("s_nop 0")
        a(f"buffer_load_dwordx4 v2, s[{SWS}:{SWS + 3}], s61 offen lds")
    a(f"buffer_load_dwordx4 {vr(QF, 4)}, v5, s[{SWS}:{SWS + 3}], s54 offen")
    a("v_mov_b32 v7, 0x3f803f80")
    for r in range(72):
        a(f"v_mov_b32 v{VF + r}, v7")
    a("v_lshlrev_b32 v7, 2, v4")
    a("v_sub_u32 v7, v3, v7")
    for r in range(16):
        c = 8 * (r // 4) + (r % 4)
        a(f"v_cmp_le_i32 s[{MK + 2 * r}:{MK + 2 * r + 1}], {c}, v7")
    a("v_mov_b32 v3, 0xffff")
    a("v_mov_b32 v7, 0xffff0000")
    a("s_nop 1")
    for j in range(8):
        a(f"v_cndmask_b32 v{MPK + j}, 0, v3, s[{MK + 4 * j}:{MK + 4 * j + 1}]")
        a(f"v_cndmask_b32 v{SC + j}, 0, v7, s[{MK + 4 * j + 2}:{MK + 4 * j + 3}]")
    for j in range(8):
        a(f"v_or_b32 v{MPK + j}, v{MPK + j}, v{SC + j}")
    for r in range(16):
        a(f"v_mov_b32 v{OA + r}, 0")
    a("v_mov_b32 v3, 0xff800000")
    a("v_mov_b32 v7, 0xff800000")
    a("s_mov_b32 s48, 0xff80ff80")
    a("s_mov_b32 s49, 0x3eb8aa3b")
    a.stamp()
    a("s_waitcnt vmcnt(0)")
    a("s_barrier")
    a.stamp()
    korder = [0, 8, 1, 2, 3, 4, 5, 6, 7]
    for i in korder:
        a(f"ds_read_b128 {vr(KF + 4 * i, 4)}, v6 offset:{i * 1024}")

    def mfma_s(dst, i):
        a(f"v_mfma_f32_32x32x16_bf16 {vr(dst, 16)}, {vr(KF + 4 * i, 4)}, {vr(QF, 4)}, 0")

    def proc(src, slot):
        for q in range(8):
            m = (3, 7)[q & 1]
            a(f"v_max3_f32 v{m}, v{m}, v{src + 2 * q}, v{src + 2 * q + 1}")
        for q in range(8):
            a(f"v_cvt_pk_bf16_f32 v{PK + 8 * slot + q}, v{src + 2 * q}, v{src + 2 * q + 1}")

    def vreads(tiles):
        a("s_mov_b32 exec_lo, 0xffff")
        a("s_mov_b32 exec_hi, 0xffff")
        for i in tiles:
            for u in range(2):
                a(f"ds_read_b128 {vr(VF + 8 * i + 4 * u, 4)}, v6 offset:{16384 + i * 1024 + u * 512}")
        a("s_mov_b64 exec, -1")

    a("s_waitcnt lgkmcnt(7)")
    mfma_s(SA, 0)
    mfma_s(SB, 8)
    a("s_waitcnt lgkmcnt(6)")
    mfma_s(SC, 1)
    a("s_waitcnt lgkmcnt(0)")
    vreads([8, 0, 1, 2, 3, 4])
    a("s_cmp_ge_u32 s51, 8")
    a("s_cbranch_scc1 K2_HAVE0")
    for r in range(16):
        a(f"v_mov_b32 v{SA + r}, 0xff800000")
    a.label("K2_HAVE0")
    for r in range(16):
        a(f"v_cndmask_b32 v{SA + r}, v{SA + r}, v{SB + r}, s[{MK + 2 * r}:{MK + 2 * r + 1}]")
    proc(SA, 0)
    bufs = [SC, SB]
    for i in range(1, 8):
        cur = bufs[(i - 1) % 2]
        nxt = bufs[i % 2]
        if i + 1 < 8:
            mfma_s(nxt, i + 1)
        if i == 2:
            a("s_waitcnt lgkmcnt(0)")
            vreads([5, 6, 7])
        a(f"s_cmp_ge_u32 s51, {8 - i}")
        a(f"s_cbranch_scc1 K2_T{i}_OK")
        for q in range(8):
            a(f"v_mov_b32 v{PK + 8 * i + q}, s48")
        a("s_nop 3")
        a(f"s_branch K2_T{i}_DONE")
        a.label(f"K2_T{i}_OK")
        proc(cur, i)
        a.label(f"K2_T{i}_DONE")
    a.stamp()
    a("v_max_f32 v3, v3, v7")
    a("v_mov_b32 v7, v3")
    a("s_nop 1")
    a("v_permlane32_swap_b32 v3, v7")
    a("s_nop 1")
    a("v_max_f32 v3, v3, v7")
    a("v_cvt_pk_bf16_f32 v3, v3, v3")
    a("v_and_b32 v3, 0xffff0000, v3")
    a("v_mul_f32 v3, s49, v3")
    a("v_sub_f32 v3, 0, v3")
    E = SA
    P = SB

    def expo(slot, pdst):
        for q in range(8):
            src = PK + 8 * slot + q
            a(f"v_lshlrev_b32 v{E + 2 * q}, 16, v{src}")
            a(f"v_and_b32 v{E + 2 * q + 1}, 0xffff0000, v{src}")
        for r in range(16):
            a(f"v_fma_f32 v{E + r}, v{E + r}, s49, v3")
        for r in range(16):
            a(f"v_exp_f32 v{E + r}, v{E + r}")
        a("s_nop 0")
        for q in range(8):
            a(f"v_cvt_pk_bf16_f32 v{pdst + q}, v{E + 2 * q}, v{E + 2 * q + 1}")

    def pv(i, psrc):
        for u in range(2):
            a(f"v_mfma_f32_32x32x16_bf16 {vr(OA, 16)}, {vr(VF + 8 * i + 4 * u, 4)}, {vr(psrc + 4 * u, 4)}, {vr(OA, 16)}")

    expo(0, SC)
    for q in range(8):
        a(f"v_and_b32 v{P + q}, v{SC + q}, v{MPK + q}")
        a(f"v_bfi_b32 v{P + 8 + q}, v{MPK + q}, 0, v{SC + q}")
    a("s_waitcnt lgkmcnt(0)")
    a("s_nop 0")
    pv(8, P)
    pv(0, P + 8)
    pbufs = [SC, SC + 8]
    for i in range(1, 8):
        pb = pbufs[i % 2]
        expo(i, pb)
        a("s_nop 1")
        pv(i, pb)
    a("s_nop 7")
    a("s_nop 7")
    a(f"v_rcp_f32 v7, v{OA + 8}")
    a("s_nop 0")
    for r in range(8):
        a(f"v_mul_f32 v{OA + r}, v{OA + r}, v7")
    for q in range(4):
        a(f"v_cvt_pk_bf16_f32 v{SA + q}, v{OA + 2 * q}, v{OA + 2 * q + 1}")
    a("s_lshl_b32 s55, s51, 5")
    a("s_add_u32 s55, s55, s50")
    a("s_lshl_b32 s55, s55, 10")
    a(f"s_add_u32 s55, s55, {WS_O}")
    a(f"buffer_store_dwordx4 {vr(SA, 4)}, v5, s[{SWS}:{SWS + 3}], s55 offen")
    a.diag_end(1, 52, "K2_END")
    a.label("K2_END")
    a("s_endpgm")
    return name, 256, 80


def gen_k3(a):
    name = "oproj_kernel"
    kernel_head(a, name)
    SW, SWS, SO = 12, 16, 20
    a("s_cmp_ge_u32 s2, 256")
    a("s_cbranch_scc1 K3_END")
    a.diag_begin()
    a("s_load_dwordx4 s[4:7], s[0:1], 16")
    a("s_load_dwordx2 s[8:9], s[0:1], 40")
    a("s_and_b32 s24, s2, 7")
    a("s_lshr_b32 s25, s2, 3")
    a("s_and_b32 s26, s25, 3")
    a("s_lshl_b32 s26, s26, 3")
    a("s_add_u32 s24, s24, s26")
    a("s_lshr_b32 s25, s25, 2")
    a("v_and_b32 v1, 63, v0")
    a("v_lshrrev_b32 v2, 6, v0")
    a("v_and_b32 v3, 31, v1")
    a("v_lshrrev_b32 v4, 5, v1")
    a("v_readfirstlane_b32 s26, v2")
    a("v_lshlrev_b32 v5, 4, v1")
    a("s_and_b32 s27, s26, 1")
    a("s_lshr_b32 s28, s26, 1")
    a("v_lshlrev_b32 v11, 5, v3")
    a("v_lshl_add_u32 v11, v4, 4, v11")
    a("s_lshl_b32 s29, s27, 15")
    a("v_add_u32 v11, s29, v11")
    a("v_lshrrev_b32 v6, 4, v1")
    a("v_and_b32 v6, 1, v6")
    a("v_lshlrev_b32 v6, 2, v6")
    a("v_and_b32 v7, 7, v1")
    a("v_xor_b32 v6, v6, v7")
    a("v_lshlrev_b32 v6, 4, v6")
    a("v_lshrrev_b32 v7, 3, v1")
    a("v_lshl_add_u32 v6, v7, 10, v6")
    a("v_lshrrev_b32 v8, 2, v1")
    a("v_and_b32 v8, 3, v8")
    a("v_lshrrev_b32 v9, 1, v8")
    a("v_xor_b32 v9, s28, v9")
    a("v_lshlrev_b32 v9, 6, v9")
    a("v_lshl_add_u32 v8, v4, 2, v8")
    a("v_lshl_add_u32 v8, v8, 7, v9")
    a("v_lshrrev_b32 v9, 4, v1")
    a("v_and_b32 v9, 1, v9")
    a("v_lshl_add_u32 v8, v9, 5, v8")
    a("v_and_b32 v9, 1, v1")
    a("v_lshl_add_u32 v8, v9, 4, v8")
    a("v_lshrrev_b32 v9, 1, v1")
    a("v_and_b32 v9, 1, v9")
    a("v_lshl_add_u32 v8, v9, 3, v8")
    a("v_add_u32 v8, 0x10000, v8")
    a("v_lshlrev_b32 v10, 10, v3")
    a("v_lshl_add_u32 v10, v4, 4, v10")
    a("s_lshl_b32 s31, s24, 16")
    a("s_lshl_b32 s32, s27, 15")
    a("s_add_u32 s31, s31, s32")
    a("s_lshl_b32 s32, s25, 7")
    a("s_add_u32 s31, s31, s32")
    a("s_lshl_b32 s32, s28, 6")
    a("s_add_u32 s31, s31, s32")
    a("s_lshl_b32 s33, s24, 16")
    a("s_lshl_b32 s34, s27, 15")
    a("s_add_u32 s33, s33, s34")
    a("s_lshl_b32 s34, s28, 12")
    a("s_add_u32 s33, s33, s34")
    a(f"s_add_u32 s33, s33, {WS_O}")
    a("s_lshl_b32 s34, s27, 15")
    a("s_lshl_b32 s35, s28, 12")
    a("s_add_u32 s34, s34, s35")
    a("s_lshl_b32 s35, s26, 15")
    a("s_lshl_b32 s36, s25, 7")
    a("s_add_u32 s35, s35, s36")
    a("s_lshl_b32 s36, s26, 12")
    a("s_add_u32 s36, s36, 0x10000")
    a("s_waitcnt lgkmcnt(0)")
    srd(a, SW, 4, 512 * 512 * 2)
    srd(a, SO, 6, 2048 * 512 * 2)
    srd(a, SWS, 8, WS_BYTES)
    ACC = 16
    FR = 32
    for j in range(4):
        for i in range(4):
            a(f"s_add_u32 s37, s33, {j * 8192 + i * 1024}")
            a(f"s_add_u32 s38, s34, {j * 8192 + i * 1024}")
            a("s_mov_b32 m0, s38")
            a("s_nop 0")
            a(f"buffer_load_dwordx4 v5, s[{SWS}:{SWS + 3}], s37 offen lds")
        for i in range(4):
            a(f"s_add_u32 s37, s35, {j * 131072 + i * 8192}")
            a(f"s_add_u32 s38, s36, {j * 16384 + i * 1024}")
            a("s_mov_b32 m0, s38")
            a("s_nop 0")
            a(f"buffer_load_dwordx4 v6, s[{SW}:{SW + 3}], s37 offen lds")
    a.stamp()
    for r in range(16):
        a(f"v_mov_b32 v{ACC + r}, 0")

    def reads(s):
        f = FR + (s % 4) * 8
        a(f"ds_read_b128 {vr(f, 4)}, v11 offset:{s * 1024}")
        a(f"ds_read_b64_tr_b16 {vr(f + 4, 2)}, v8 offset:{s * 2048}")
        a(f"ds_read_b64_tr_b16 {vr(f + 6, 2)}, v8 offset:{s * 2048 + 1024}")

    for j in range(4):
        a(f"s_waitcnt vmcnt({32 - 8 * (j + 1)})")
        a("s_barrier")
        if j in (0, 3):
            a.stamp()
        for s in range(8 * j, 8 * j + 3):
            reads(s)
        for s in range(8 * j, 8 * j + 8):
            if s + 3 < 8 * j + 8:
                reads(s + 3)
                a("s_waitcnt lgkmcnt(9)")
            else:
                a(f"s_waitcnt lgkmcnt({3 * (8 * j + 7 - s)})")
            f = FR + (s % 4) * 8
            a(f"v_mfma_f32_32x32x16_bf16 {vr(ACC, 16)}, {vr(f + 4, 4)}, {vr(f, 4)}, {vr(ACC, 16)}")
    a("s_nop 7")
    a("s_nop 7")
    T = 32
    for u in range(2):
        for q in range(4):
            a(f"v_cvt_pk_bf16_f32 v{T + 4 * u + q}, v{ACC + 8 * u + 2 * q}, v{ACC + 8 * u + 2 * q + 1}")
        a(f"buffer_store_dwordx4 {vr(T + 4 * u, 4)}, v10, s[{SO}:{SO + 3}], s31 offen offset:{u * 32}")
    a.diag_end(2, 26, "K3_END")
    a.label("K3_END")
    a("s_endpgm")
    return name, 64, 40


def main():
    a = Asm()
    hdr = open("standalone__sliding_block__prompt.s.ref").read().split("\n")
    for line in hdr:
        if line.startswith("; @launch") or not line.startswith(";"):
            break
        a.raw(line)
    a.raw("; @launch kernel=qkv_kernel grid=(256,1,1) block=(256,1,1) lds=131072")
    a.raw("; @launch kernel=attn_kernel grid=(256,1,1) block=(512,1,1) lds=32768")
    a.raw("; @launch kernel=oproj_kernel grid=(256,1,1) block=(256,1,1) lds=131072")
    a.raw('.amdgcn_target "amdgcn-amd-amdhsa--gfx950"')
    a.raw(".text")
    ks = [gen_k1(a), gen_k2(a), gen_k3(a)]
    a.raw('.section .rodata,"a"')
    for name, v, s in ks:
        kd(a, name, v, s)
    open(OUT, "w").write(a.text())


main()
```

```python
import sys

OUT = sys.argv[1] if len(sys.argv) > 1 else "standalone__sliding_block__prompt.s"

MB = 1 << 20
WS_Q, WS_K, WS_V, WS_O = 0, 2 * MB, 4 * MB, 6 * MB
WS_BYTES = 8 * MB


import os
DIAG = int(os.environ.get("DIAG", "0"))


class Asm:
    def __init__(self):
        self.lines = []
        self.nst = 0

    def stamp(self):
        if DIAG:
            i = self.nst
            self.nst += 1
            self(f"s_memtime s[{82 + 2 * i}:{83 + 2 * i}]")

    def diag_begin(self):
        if DIAG:
            self.nst = 0
            self("s_memrealtime s[100:101]")
            self.stamp()

    def diag_end(self, kidx, wave_sreg, lab):
        if not DIAG:
            return
        self.stamp()
        self("s_waitcnt vmcnt(0) lgkmcnt(0)")
        self.stamp()
        self("s_memrealtime s[98:99]")
        self("s_load_dwordx2 s[76:77], s[0:1], 40")
        self("s_waitcnt lgkmcnt(0)")
        self(f"s_cmp_lg_u32 s{wave_sreg}, 0")
        self(f"s_cbranch_scc1 {lab}")
        self("s_and_b32 s77, s77, 0xffff")
        self("s_mov_b32 s78, 0x2000000")
        self("s_mov_b32 s79, 0x00020000")
        self("s_lshl_b32 s80, s2, 7")
        self(f"s_add_u32 s80, s80, {16 * MB + kidx * 65536}")
        self("v_mov_b32 v1, 0")
        self("v_mov_b32 v2, s100")
        self("buffer_store_dword v2, v1, s[76:79], s80 offen")
        self("v_mov_b32 v2, s98")
        self("buffer_store_dword v2, v1, s[76:79], s80 offen offset:4")
        for i in range(self.nst):
            self(f"s_sub_u32 s81, s{82 + 2 * i}, s82")
            self("v_mov_b32 v2, s81")
            self(f"buffer_store_dword v2, v1, s[76:79], s80 offen offset:{8 + 4 * i}")

    def __call__(self, s):
        self.lines.append("    " + s)

    def label(self, l):
        self.lines.append(l + ":")

    def raw(self, s):
        self.lines.append(s)

    def text(self):
        return "\n".join(self.lines) + "\n"


def vr(base, n):
    return f"v[{base}:{base + n - 1}]"


def srd(a, d, ptr_lo, nbytes):
    a(f"s_mov_b32 s{d}, s{ptr_lo}")
    a(f"s_and_b32 s{d + 1}, s{ptr_lo + 1}, 0xffff")
    a(f"s_mov_b32 s{d + 2}, {nbytes:#x}")
    a(f"s_mov_b32 s{d + 3}, 0x00020000")


def kernel_head(a, name):
    a.raw(f".globl {name}")
    a.raw(".p2align 8")
    a.raw(f".type {name},@function")
    a.label(name)


def kd(a, name, vgpr, sgpr):
    acc = (vgpr + 3) // 4 * 4
    a.raw(".p2align 6")
    a.raw(f".amdhsa_kernel {name}")
    a.raw(f"  .amdhsa_next_free_vgpr {vgpr}")
    a.raw(f"  .amdhsa_next_free_sgpr {102 if DIAG else sgpr}")
    a.raw(f"  .amdhsa_accum_offset {acc}")
    a.raw("  .amdhsa_group_segment_fixed_size 0")
    a.raw("  .amdhsa_kernarg_size 48")
    a.raw("  .amdhsa_user_sgpr_count 2")
    a.raw("  .amdhsa_user_sgpr_kernarg_segment_ptr 1")
    a.raw("  .amdhsa_system_sgpr_workgroup_id_x 1")
    a.raw(".end_amdhsa_kernel")


def gen_k1(a):
    name = "qkv_kernel"
    kernel_head(a, name)
    SX, SW, SWS = 12, 16, 20
    a("s_cmp_ge_u32 s2, 256")
    a("s_cbranch_scc1 K1_END")
    a.diag_begin()
    a("s_load_dwordx4 s[4:7], s[0:1], 0")
    a("s_load_dwordx2 s[8:9], s[0:1], 40")
    a("v_lshrrev_b32 v2, 6, v0")
    a("v_and_b32 v1, 63, v0")
    a("s_and_b32 s24, s2, 1")
    a("s_lshl_b32 s24, s24, 2")
    a("s_bfe_u32 s25, s2, 0x20003")
    a("s_add_u32 s24, s24, s25")
    a("v_readfirstlane_b32 s26, v2")
    a("s_bfe_u32 s25, s2, 0x20001")
    a("s_lshl_b32 s25, s25, 3")
    a("s_lshr_b32 s27, s2, 5")
    a("s_add_u32 s25, s25, s27")
    a("s_cmp_ge_u32 s26, 4")
    a("s_cbranch_scc1 K1_LOADER")
    a("v_and_b32 v3, 31, v1")
    a("v_lshrrev_b32 v4, 5, v1")
    a("s_and_b32 s27, s26, 1")
    a("s_lshr_b32 s28, s26, 1")
    a("s_lshl_b32 s29, s27, 5")
    a("v_add_u32 v9, s29, v3")
    a("v_lshrrev_b32 v10, 1, v9")
    a("v_and_b32 v10, 7, v10")
    a("v_lshlrev_b32 v9, 7, v9")
    for s in range(4):
        a(f"v_add_u32 v11, {2 * s}, v4")
        a("v_xor_b32 v11, v11, v10")
        a(f"v_lshl_add_u32 v{12 + s}, v11, 4, v9")
    a("v_lshrrev_b32 v9, 2, v1")
    a("v_and_b32 v9, 3, v9")
    a("v_lshrrev_b32 v10, 1, v9")
    a("v_xor_b32 v10, s28, v10")
    a("v_lshlrev_b32 v10, 6, v10")
    a("v_lshl_add_u32 v9, v4, 3, v9")
    a("v_lshl_add_u32 v10, v9, 7, v10")
    a("v_lshrrev_b32 v9, 4, v1")
    a("v_and_b32 v9, 1, v9")
    a("v_lshl_add_u32 v10, v9, 5, v10")
    a("v_and_b32 v9, 3, v1")
    a("v_lshl_add_u32 v10, v9, 3, v10")
    a("v_add_u32 v10, 0x8000, v10")
    a("v_add_u32 v11, 0xc000, v10")
    a("v_lshlrev_b32 v5, 5, v3")
    a("v_lshl_add_u32 v5, v4, 4, v5")
    a("v_and_b32 v6, 15, v1")
    a("v_lshlrev_b32 v6, 5, v6")
    a("v_lshl_add_u32 v6, v4, 4, v6")
    a("v_lshrrev_b32 v9, 4, v3")
    a("v_lshl_add_u32 v6, v9, 16, v6")
    ACC = 16
    FR = 64
    for r in range(48):
        a(f"v_mov_b32 v{ACC + r}, 0")
    a("s_lshl_b32 s31, s24, 18")
    a("s_lshl_b32 s32, s28, 17")
    a("s_add_u32 s31, s31, s32")
    a("s_lshl_b32 s32, s25, 11")
    a("s_add_u32 s31, s31, s32")
    a("s_lshl_b32 s32, s27, 10")
    a("s_add_u32 s31, s31, s32")
    a("s_add_u32 s32, s31, 65536")
    a(f"s_add_u32 s33, s31, {WS_K}")
    a(f"s_add_u32 s34, s33, 65536")
    a(f"s_add_u32 s35, s31, {WS_V}")
    a("s_waitcnt lgkmcnt(0)")
    srd(a, SWS, 8, WS_BYTES)

    def reads(c, s):
        b = c % 4
        f = FR + ((4 * c + s) % 2) * 16
        a(f"ds_read_b128 {vr(f, 4)}, v{12 + s} offset:{b * 8192}")
        breg = 10 if b < 2 else 11
        boff = (b % 2) * 24576 + s * 2048
        for p in range(3):
            a(f"ds_read_b64_tr_b16 {vr(f + 4 + 4 * p, 2)}, v{breg} offset:{boff + p * 8192}")
            a(f"ds_read_b64_tr_b16 {vr(f + 6 + 4 * p, 2)}, v{breg} offset:{boff + p * 8192 + 512}")

    for c in range(8):
        a("s_barrier")
        if c in (0, 1, 4, 7):
            a.stamp()
        reads(c, 0)
        for s in range(4):
            if s + 1 < 4:
                reads(c, s + 1)
                a("s_waitcnt lgkmcnt(7)")
            else:
                a("s_waitcnt lgkmcnt(0)")
            f = FR + ((4 * c + s) % 2) * 16
            af = vr(f, 4)
            a(f"v_mfma_f32_32x32x16_bf16 {vr(ACC, 16)}, {vr(f + 4, 4)}, {af}, {vr(ACC, 16)}")
            a(f"v_mfma_f32_32x32x16_bf16 {vr(ACC + 16, 16)}, {vr(f + 8, 4)}, {af}, {vr(ACC + 16, 16)}")
            a(f"v_mfma_f32_32x32x16_bf16 {vr(ACC + 32, 16)}, {af}, {vr(f + 12, 4)}, {vr(ACC + 32, 16)}")
    a("s_nop 7")
    a("s_nop 3")
    T = 64
    for tile, soffs in ((0, (31, 32)), (1, (33, 34))):
        for hd in range(2):
            base = ACC + 16 * tile + 8 * hd
            t = T + 4 * (2 * tile + hd)
            for q in range(4):
                a(f"v_cvt_pk_bf16_f32 v{t + q}, v{base + 2 * q}, v{base + 2 * q + 1}")
            a(f"buffer_store_dwordx4 {vr(t, 4)}, v5, s[{SWS}:{SWS + 3}], s{soffs[hd]} offen")
    for u in range(2):
        base = ACC + 32 + 8 * u
        t = T + 16 + 4 * u
        for q in range(4):
            a(f"v_cvt_pk_bf16_f32 v{t + q}, v{base + 2 * q}, v{base + 2 * q + 1}")
        a(f"buffer_store_dwordx4 {vr(t, 4)}, v6, s[{SWS}:{SWS + 3}], s35 offen offset:{u * 512}")
    a.diag_end(0, 26, "K1_END")
    a("s_endpgm")
    a.label("K1_LOADER")
    a("s_sub_u32 s26, s26, 4")
    a("v_lshrrev_b32 v5, 3, v1")
    a("v_and_b32 v6, 7, v1")
    a("s_and_b32 s27, s26, 1")
    a("v_lshrrev_b32 v7, 4, v1")
    a("s_lshl_b32 s29, s27, 2")
    a("v_add_u32 v7, s29, v7")
    a("v_xor_b32 v7, v7, v6")
    a("v_lshlrev_b32 v7, 4, v7")
    a("v_lshl_add_u32 v7, v5, 10, v7")
    a("v_lshrrev_b32 v8, 4, v1")
    a("v_and_b32 v8, 1, v8")
    a("v_lshlrev_b32 v8, 2, v8")
    a("v_xor_b32 v8, v8, v6")
    a("v_lshlrev_b32 v8, 4, v8")
    a("v_mul_u32_u24 v9, 3072, v5")
    a("v_add_u32 v8, v8, v9")
    a("s_lshl_b32 s29, s25, 16")
    a("s_lshl_b32 s30, s26, 13")
    a("s_add_u32 s29, s29, s30")
    a("s_lshl_b32 s30, s26, 10")
    a("s_mul_i32 s31, s26, 49152")
    a("s_lshl_b32 s32, s24, 7")
    a("s_add_u32 s31, s31, s32")
    a("s_lshl_b32 s32, s26, 11")
    a("s_add_u32 s32, s32, 0x8000")
    a("s_waitcnt lgkmcnt(0)")
    srd(a, SX, 4, 2048 * 512 * 2)
    srd(a, SW, 6, 512 * 1536 * 2)

    def dma(c):
        b = c % 4
        for i2 in range(2):
            a(f"s_add_u32 s33, s29, {c * 128 + i2 * 32768}")
            a(f"s_add_u32 m0, s30, {b * 8192 + i2 * 4096}")
            a("s_nop 0")
            a(f"buffer_load_dwordx4 v7, s[{SX}:{SX + 3}], s33 offen lds")
        for p in range(3):
            for i2 in range(2):
                a(f"s_add_u32 s33, s31, {c * 64 * 3072 + i2 * 8 * 3072 + p * 1024}")
                a(f"s_add_u32 m0, s32, {b * 24576 + p * 8192 + i2 * 1024}")
                a("s_nop 0")
                a(f"buffer_load_dwordx4 v8, s[{SW}:{SW + 3}], s33 offen lds")

    for c in range(4):
        dma(c)
    for c in range(8):
        rem = 3 if c == 0 else min(c + 2, 7) - c
        a(f"s_waitcnt vmcnt({8 * rem})")
        a("s_barrier")
        if 1 <= c and c + 3 < 8:
            dma(c + 3)
    a.label("K1_END")
    a("s_endpgm")
    return name, 96, 40


def gen_k2(a):
    name = "attn_kernel"
    kernel_head(a, name)
    SWS = 12
    MK = 16
    a("s_cmp_ge_u32 s2, 256")
    a("s_cbranch_scc1 K2_END")
    a.diag_begin()
    a("s_load_dwordx2 s[8:9], s[0:1], 40")
    a("v_lshrrev_b32 v2, 6, v0")
    a("v_and_b32 v1, 63, v0")
    a("s_and_b32 s50, s2, 1")
    a("s_lshl_b32 s50, s50, 4")
    a("s_bfe_u32 s51, s2, 0x40003")
    a("s_add_u32 s50, s50, s51")
    a("v_readfirstlane_b32 s52, v2")
    a("s_bfe_u32 s51, s2, 0x20001")
    a("s_lshl_b32 s51, s51, 1")
    a("s_lshr_b32 s53, s2, 7")
    a("s_add_u32 s51, s51, s53")
    a("v_and_b32 v3, 31, v1")
    a("v_lshrrev_b32 v4, 5, v1")
    a("v_lshlrev_b32 v5, 5, v3")
    a("v_lshl_add_u32 v5, v4, 4, v5")
    a("v_lshlrev_b32 v2, 4, v1")
    a("s_lshl_b32 s53, s50, 16")
    a("s_lshl_b32 s56, s51, 3")
    a("s_add_u32 s51, s56, s52")
    a("s_lshl_b32 s54, s51, 10")
    a("s_add_u32 s54, s54, s53")
    a("s_lshl_b32 s57, s52, 1")
    a("s_add_u32 s58, s56, s57")
    a("s_sub_i32 s58, s58, 8")
    a("s_add_i32 s59, s58, 1")
    a("s_max_i32 s58, s58, 0")
    a("s_max_i32 s59, s59, 0")
    a("s_lshl_b32 s58, s58, 10")
    a("s_lshl_b32 s59, s59, 10")
    a("s_add_u32 s58, s58, s53")
    a("s_add_u32 s59, s59, s53")
    a("s_lshl_b32 s57, s57, 10")
    a("s_lshl_b32 s60, s52, 10")
    a("v_add_u32 v6, s60, v5")
    a("s_waitcnt lgkmcnt(0)")
    srd(a, SWS, 8, WS_BYTES)
    QF, ONES, MPK, OA, LA = 8, 12, 16, 24, 40
    S0 = 56
    T = 184
    KF = 200
    PB = 236
    for (sg, ws, lo) in ((58, WS_K, 0), (59, WS_K, 1024), (58, WS_V, 16384), (59, WS_V, 17408)):
        a(f"s_add_u32 s61, s{sg}, {ws}")
        a(f"s_add_u32 m0, s57, {lo}")
        a("s_nop 0")
        a(f"buffer_load_dwordx4 v2, s[{SWS}:{SWS + 3}], s61 offen lds")
    a(f"buffer_load_dwordx4 {vr(QF, 4)}, v5, s[{SWS}:{SWS + 3}], s54 offen")
    for r in range(4):
        a(f"v_mov_b32 v{ONES + r}, 0x3f803f80")
    a("v_lshlrev_b32 v7, 2, v4")
    a("v_sub_u32 v7, v3, v7")
    for r in range(16):
        c = 8 * (r // 4) + (r % 4)
        a(f"v_cmp_le_i32 s[{MK + 2 * r}:{MK + 2 * r + 1}], {c}, v7")
    a("v_mov_b32 v3, 0xffff")
    a("v_mov_b32 v7, 0xffff0000")
    a("s_nop 1")
    for j in range(8):
        a(f"v_cndmask_b32 v{MPK + j}, 0, v3, s[{MK + 4 * j}:{MK + 4 * j + 1}]")
        a(f"v_cndmask_b32 v{PB + j}, 0, v7, s[{MK + 4 * j + 2}:{MK + 4 * j + 3}]")
    for j in range(8):
        a(f"v_or_b32 v{MPK + j}, v{MPK + j}, v{PB + j}")
    for r in range(32):
        a(f"v_mov_b32 v{OA + r}, 0")
    a("v_mov_b32 v3, 0xff800000")
    a("v_mov_b32 v7, 0xff800000")
    a("v_mov_b32 v4, 0x3eb8aa3b")
    a.stamp()
    a("s_waitcnt vmcnt(0)")
    a("s_barrier")
    a.stamp()
    korder = [0, 8, 1, 2, 3, 4, 5, 6, 7]
    for i in korder:
        a(f"ds_read_b128 {vr(KF + 4 * i, 4)}, v6 offset:{i * 1024}")

    def sdst(i):
        return T if i == 0 else (S0 if i == 8 else S0 + 16 * i)

    for n, i in enumerate(korder):
        a(f"s_waitcnt lgkmcnt({8 - n})")
        a(f"v_mfma_f32_32x32x16_bf16 {vr(sdst(i), 16)}, {vr(KF + 4 * i, 4)}, {vr(QF, 4)}, 0")

    vorder = [8, 0, 1, 2, 3, 4, 5, 6, 7]

    def vread(n):
        i = vorder[n]
        b = KF + 8 * (n % 4)
        for u in range(2):
            a(f"ds_read_b128 {vr(b + 4 * u, 4)}, v6 offset:{16384 + i * 1024 + u * 512}")

    for n in range(4):
        vread(n)

    def proc(src):
        for q in range(8):
            m = (3, 7)[q & 1]
            a(f"v_max3_f32 v{m}, v{m}, v{src + 2 * q}, v{src + 2 * q + 1}")
        for r in range(16):
            a(f"v_cvt_pk_bf16_f32 v{src + r}, 0, v{src + r}")

    a("s_cmp_ge_u32 s51, 8")
    a("s_cbranch_scc1 K2_HAVE0")
    for r in range(16):
        a(f"v_mov_b32 v{T + r}, 0xff800000")
    a.label("K2_HAVE0")
    for r in range(16):
        a(f"v_cndmask_b32 v{S0 + r}, v{T + r}, v{S0 + r}, s[{MK + 2 * r}:{MK + 2 * r + 1}]")
    proc(S0)
    for i in range(1, 8):
        a(f"s_cmp_ge_u32 s51, {8 - i}")
        a(f"s_cbranch_scc1 K2_T{i}_OK")
        for r in range(16):
            a(f"v_mov_b32 v{S0 + 16 * i + r}, 0xff800000")
        a(f"s_branch K2_T{i}_DONE")
        a.label(f"K2_T{i}_OK")
        proc(S0 + 16 * i)
        a.label(f"K2_T{i}_DONE")
    a.stamp()
    a("v_max_f32 v3, v3, v7")
    a("v_mov_b32 v7, v3")
    a("s_nop 1")
    a("v_permlane32_swap_b32 v3, v7")
    a("s_nop 1")
    a("v_max_f32 v3, v3, v7")
    a("v_cvt_pk_bf16_f32 v3, 0, v3")
    a("v_mul_f32 v3, v4, v3")
    a("v_sub_f32 v3, 0, v3")

    def expo(src, pdst):
        for r in range(16):
            a(f"v_fma_f32 v{src + r}, v{src + r}, v4, v3")
        for r in range(16):
            a(f"v_exp_f32 v{src + r}, v{src + r}")
        a("s_nop 0")
        for q in range(8):
            a(f"v_cvt_pk_bf16_f32 v{pdst + q}, v{src + 2 * q}, v{src + 2 * q + 1}")

    def pv(n, psrc):
        b = KF + 8 * (n % 4)
        for u in range(2):
            a(f"v_mfma_f32_32x32x16_bf16 {vr(OA, 16)}, {vr(b + 4 * u, 4)}, {vr(psrc + 4 * u, 4)}, {vr(OA, 16)}")

    def lsum(psrc):
        for u in range(2):
            a(f"v_mfma_f32_32x32x16_bf16 {vr(LA, 16)}, {vr(ONES, 4)}, {vr(psrc + 4 * u, 4)}, {vr(LA, 16)}")

    expo(S0, T)
    for q in range(8):
        a(f"v_and_b32 v{PB + q}, v{T + q}, v{MPK + q}")
        a(f"v_bfi_b32 v{PB + 8 + q}, v{MPK + q}, 0, v{T + q}")
    a("s_waitcnt lgkmcnt(4)")
    lsum(T)
    pv(0, PB)
    pv(1, PB + 8)
    vread(4)
    vread(5)
    pbufs = [T + 8, T]
    for i in range(1, 8):
        n = i + 1
        pb = pbufs[i % 2]
        expo(S0 + 16 * i, pb)
        issued = min(n + 3, 8)
        a(f"s_waitcnt lgkmcnt({2 * (issued - n)})")
        a("s_nop 0")
        lsum(pb)
        pv(n, pb)
        if n + 4 <= 8:
            vread(n + 4)
    a("s_nop 7")
    a("s_nop 7")
    a(f"v_rcp_f32 v7, v{LA}")
    a("s_nop 0")
    for r in range(8):
        a(f"v_mul_f32 v{OA + r}, v{OA + r}, v7")
    for q in range(4):
        a(f"v_cvt_pk_bf16_f32 v{T + q}, v{OA + 2 * q}, v{OA + 2 * q + 1}")
    a("s_lshl_b32 s55, s51, 5")
    a("s_add_u32 s55, s55, s50")
    a("s_lshl_b32 s55, s55, 10")
    a(f"s_add_u32 s55, s55, {WS_O}")
    a(f"buffer_store_dwordx4 {vr(T, 4)}, v5, s[{SWS}:{SWS + 3}], s55 offen")
    a("s_sub_u32 s63, s52, 7")
    a.diag_end(1, 52 if DIAG != 2 else 63, "K2_END")
    a.label("K2_END")
    a("s_endpgm")
    return name, 252, 80


def gen_k3(a):
    name = "oproj_kernel"
    kernel_head(a, name)
    SW, SWS, SO = 12, 16, 20
    a("s_cmp_ge_u32 s2, 256")
    a("s_cbranch_scc1 K3_END")
    a.diag_begin()
    a("s_load_dwordx4 s[4:7], s[0:1], 16")
    a("s_load_dwordx2 s[8:9], s[0:1], 40")
    a("v_lshrrev_b32 v2, 6, v0")
    a("v_and_b32 v1, 63, v0")
    a("s_and_b32 s25, s2, 1")
    a("s_lshl_b32 s25, s25, 2")
    a("s_bfe_u32 s24, s2, 0x20003")
    a("s_add_u32 s25, s25, s24")
    a("v_readfirstlane_b32 s26, v2")
    a("s_bfe_u32 s24, s2, 0x20001")
    a("s_lshl_b32 s24, s24, 3")
    a("s_lshr_b32 s27, s2, 5")
    a("s_add_u32 s24, s24, s27")
    a("s_cmp_ge_u32 s26, 4")
    a("s_cbranch_scc1 K3_LOADER")
    a("v_and_b32 v3, 31, v1")
    a("v_lshrrev_b32 v4, 5, v1")
    a("s_and_b32 s27, s26, 1")
    a("s_lshr_b32 s28, s26, 1")
    a("v_lshlrev_b32 v11, 5, v3")
    a("v_lshl_add_u32 v11, v4, 4, v11")
    a("s_lshl_b32 s29, s27, 15")
    a("v_add_u32 v11, s29, v11")
    a("v_lshrrev_b32 v8, 2, v1")
    a("v_and_b32 v8, 3, v8")
    a("v_lshrrev_b32 v9, 1, v8")
    a("v_xor_b32 v9, s28, v9")
    a("v_lshlrev_b32 v9, 6, v9")
    a("v_lshl_add_u32 v8, v4, 2, v8")
    a("v_lshl_add_u32 v8, v8, 7, v9")
    a("v_lshrrev_b32 v9, 4, v1")
    a("v_and_b32 v9, 1, v9")
    a("v_lshl_add_u32 v8, v9, 5, v8")
    a("v_and_b32 v9, 1, v1")
    a("v_lshl_add_u32 v8, v9, 4, v8")
    a("v_lshrrev_b32 v9, 1, v1")
    a("v_and_b32 v9, 1, v9")
    a("v_lshl_add_u32 v8, v9, 3, v8")
    a("v_add_u32 v8, 0x10000, v8")
    a("v_lshlrev_b32 v10, 10, v3")
    a("v_lshl_add_u32 v10, v4, 4, v10")
    a("s_lshl_b32 s31, s24, 16")
    a("s_lshl_b32 s32, s27, 15")
    a("s_add_u32 s31, s31, s32")
    a("s_lshl_b32 s32, s25, 7")
    a("s_add_u32 s31, s31, s32")
    a("s_lshl_b32 s32, s28, 6")
    a("s_add_u32 s31, s31, s32")
    ACC = 16
    FR = 32
    for r in range(16):
        a(f"v_mov_b32 v{ACC + r}, 0")
    a("s_waitcnt lgkmcnt(0)")
    srd(a, SO, 6, 2048 * 512 * 2)

    def reads(s):
        f = FR + (s % 4) * 8
        a(f"ds_read_b128 {vr(f, 4)}, v11 offset:{s * 1024}")
        a(f"ds_read_b64_tr_b16 {vr(f + 4, 2)}, v8 offset:{s * 2048}")
        a(f"ds_read_b64_tr_b16 {vr(f + 6, 2)}, v8 offset:{s * 2048 + 1024}")

    NPH = 8
    SP = 32 // NPH
    for j in range(NPH):
        a("s_barrier")
        if j in (0, NPH - 1):
            a.stamp()
        pre = min(3, SP)
        for s in range(SP * j, SP * j + pre):
            reads(s)
        for s in range(SP * j, SP * j + SP):
            if s + 3 < SP * j + SP:
                reads(s + 3)
                a("s_waitcnt lgkmcnt(9)")
            else:
                a(f"s_waitcnt lgkmcnt({3 * (SP * j + SP - 1 - s)})")
            f = FR + (s % 4) * 8
            a(f"v_mfma_f32_32x32x16_bf16 {vr(ACC, 16)}, {vr(f + 4, 4)}, {vr(f, 4)}, {vr(ACC, 16)}")
    a("s_nop 7")
    a("s_nop 7")
    T = 32
    for u in range(2):
        for q in range(4):
            a(f"v_cvt_pk_bf16_f32 v{T + 4 * u + q}, v{ACC + 8 * u + 2 * q}, v{ACC + 8 * u + 2 * q + 1}")
        a(f"buffer_store_dwordx4 {vr(T + 4 * u, 4)}, v10, s[{SO}:{SO + 3}], s31 offen offset:{u * 32}")
    a.diag_end(2, 26, "K3_END")
    a("s_endpgm")
    a.label("K3_LOADER")
    a("s_sub_u32 s26, s26, 4")
    a("v_lshlrev_b32 v5, 4, v1")
    a("v_lshrrev_b32 v6, 4, v1")
    a("v_and_b32 v6, 1, v6")
    a("v_lshlrev_b32 v6, 2, v6")
    a("v_and_b32 v7, 7, v1")
    a("v_xor_b32 v6, v6, v7")
    a("v_lshlrev_b32 v6, 4, v6")
    a("v_lshrrev_b32 v7, 3, v1")
    a("v_lshl_add_u32 v6, v7, 10, v6")
    a("s_and_b32 s27, s26, 1")
    a("s_lshr_b32 s28, s26, 1")
    a("s_lshl_b32 s33, s24, 16")
    a("s_lshl_b32 s34, s27, 15")
    a("s_add_u32 s33, s33, s34")
    a("s_lshl_b32 s35, s28, 11")
    a("s_add_u32 s33, s33, s35")
    a(f"s_add_u32 s33, s33, {WS_O}")
    a("s_add_u32 s34, s34, s35")
    a("s_lshl_b32 s35, s26, 14")
    a("s_lshl_b32 s36, s25, 7")
    a("s_add_u32 s35, s35, s36")
    a("s_lshl_b32 s36, s26, 11")
    a("s_add_u32 s36, s36, 0x10000")
    a("s_waitcnt lgkmcnt(0)")
    srd(a, SW, 4, 512 * 512 * 2)
    srd(a, SWS, 8, WS_BYTES)
    for j in range(NPH):
        for i in range(2):
            a(f"s_add_u32 s37, s33, {j * 4096 + i * 1024}")
            a(f"s_add_u32 m0, s34, {j * 4096 + i * 1024}")
            a("s_nop 0")
            a(f"buffer_load_dwordx4 v5, s[{SWS}:{SWS + 3}], s37 offen lds")
        for i in range(2):
            a(f"s_add_u32 s37, s35, {j * 65536 + i * 8192}")
            a(f"s_add_u32 m0, s36, {j * 8192 + i * 1024}")
            a("s_nop 0")
            a(f"buffer_load_dwordx4 v6, s[{SW}:{SW + 3}], s37 offen lds")
    for j in range(NPH):
        a(f"s_waitcnt vmcnt({32 - 4 * (j + 1)})")
        a("s_barrier")
    a.label("K3_END")
    a("s_endpgm")
    return name, 64, 40


def main():
    a = Asm()
    hdr = open("standalone__sliding_block__prompt.s.ref").read().split("\n")
    for line in hdr:
        if line.startswith("; @launch") or not line.startswith(";"):
            break
        a.raw(line)
    a.raw("; @launch kernel=qkv_kernel grid=(256,1,1) block=(512,1,1) lds=131072")
    a.raw("; @launch kernel=attn_kernel grid=(256,1,1) block=(512,1,1) lds=33280")
    a.raw("; @launch kernel=oproj_kernel grid=(256,1,1) block=(512,1,1) lds=131072")
    a.raw('.amdgcn_target "amdgcn-amd-amdhsa--gfx950"')
    a.raw(".text")
    ks = [gen_k1(a), gen_k2(a), gen_k3(a)]
    a.raw('.section .rodata,"a"')
    for name, v, s in ks:
        kd(a, name, v, s)
    open(OUT, "w").write(a.text())


main()
```

```python
import sys

OUT = sys.argv[1] if len(sys.argv) > 1 else "standalone__sliding_block__prompt.s"

MB = 1 << 20
WS_Q, WS_K, WS_V, WS_O = 0, 2 * MB, 4 * MB, 6 * MB
WS_BYTES = 8 * MB


import os
DIAG = int(os.environ.get("DIAG", "0"))


class Asm:
    def __init__(self):
        self.lines = []
        self.nst = 0

    def stamp(self):
        if DIAG:
            i = self.nst
            self.nst += 1
            self(f"s_memtime s[{82 + 2 * i}:{83 + 2 * i}]")

    def diag_begin(self):
        if DIAG:
            self.nst = 0
            self("s_memrealtime s[100:101]")
            self.stamp()

    def diag_end(self, kidx, wave_sreg, lab):
        if not DIAG:
            return
        self.stamp()
        self("s_waitcnt vmcnt(0) lgkmcnt(0)")
        self.stamp()
        self("s_memrealtime s[98:99]")
        self("s_load_dwordx2 s[76:77], s[0:1], 40")
        self("s_waitcnt lgkmcnt(0)")
        self(f"s_cmp_lg_u32 s{wave_sreg}, 0")
        self(f"s_cbranch_scc1 {lab}")
        self("s_and_b32 s77, s77, 0xffff")
        self("s_mov_b32 s78, 0x2000000")
        self("s_mov_b32 s79, 0x00020000")
        self("s_lshl_b32 s80, s2, 7")
        self(f"s_add_u32 s80, s80, {16 * MB + kidx * 65536}")
        self("v_mov_b32 v1, 0")
        self("v_mov_b32 v2, s100")
        self("buffer_store_dword v2, v1, s[76:79], s80 offen")
        self("v_mov_b32 v2, s98")
        self("buffer_store_dword v2, v1, s[76:79], s80 offen offset:4")
        for i in range(self.nst):
            self(f"s_sub_u32 s81, s{82 + 2 * i}, s82")
            self("v_mov_b32 v2, s81")
            self(f"buffer_store_dword v2, v1, s[76:79], s80 offen offset:{8 + 4 * i}")

    def __call__(self, s):
        self.lines.append("    " + s)

    def label(self, l):
        self.lines.append(l + ":")

    def raw(self, s):
        self.lines.append(s)

    def text(self):
        return "\n".join(self.lines) + "\n"


def vr(base, n):
    return f"v[{base}:{base + n - 1}]"


def srd(a, d, ptr_lo, nbytes):
    a(f"s_mov_b32 s{d}, s{ptr_lo}")
    a(f"s_and_b32 s{d + 1}, s{ptr_lo + 1}, 0xffff")
    a(f"s_mov_b32 s{d + 2}, {nbytes:#x}")
    a(f"s_mov_b32 s{d + 3}, 0x00020000")


def kernel_head(a, name):
    a.raw(f".globl {name}")
    a.raw(".p2align 8")
    a.raw(f".type {name},@function")
    a.label(name)


def kd(a, name, vgpr, sgpr):
    acc = (vgpr + 3) // 4 * 4
    a.raw(".p2align 6")
    a.raw(f".amdhsa_kernel {name}")
    a.raw(f"  .amdhsa_next_free_vgpr {vgpr}")
    a.raw(f"  .amdhsa_next_free_sgpr {102 if DIAG else sgpr}")
    a.raw(f"  .amdhsa_accum_offset {acc}")
    a.raw("  .amdhsa_group_segment_fixed_size 0")
    a.raw("  .amdhsa_kernarg_size 48")
    a.raw("  .amdhsa_user_sgpr_count 2")
    a.raw("  .amdhsa_user_sgpr_kernarg_segment_ptr 1")
    a.raw("  .amdhsa_system_sgpr_workgroup_id_x 1")
    a.raw(".end_amdhsa_kernel")


def gen_k1(a):
    name = "qkv_kernel"
    kernel_head(a, name)
    SX, SW, SWS = 12, 16, 20
    a("s_cmp_ge_u32 s2, 256")
    a("s_cbranch_scc1 K1_END")
    a.diag_begin()
    a("s_load_dwordx4 s[4:7], s[0:1], 0")
    a("s_load_dwordx2 s[8:9], s[0:1], 40")
    a("v_lshrrev_b32 v2, 6, v0")
    a("v_and_b32 v1, 63, v0")
    a("s_and_b32 s24, s2, 1")
    a("s_lshl_b32 s24, s24, 2")
    a("s_bfe_u32 s25, s2, 0x20003")
    a("s_add_u32 s24, s24, s25")
    a("v_readfirstlane_b32 s26, v2")
    a("s_bfe_u32 s25, s2, 0x20001")
    a("s_lshl_b32 s25, s25, 3")
    a("s_lshr_b32 s27, s2, 5")
    a("s_add_u32 s25, s25, s27")
    a("s_cmp_ge_u32 s26, 4")
    a("s_cbranch_scc1 K1_LOADER")
    a("v_and_b32 v3, 31, v1")
    a("v_lshrrev_b32 v4, 5, v1")
    a("s_and_b32 s27, s26, 1")
    a("s_lshr_b32 s28, s26, 1")
    a("s_lshl_b32 s29, s27, 5")
    a("v_add_u32 v9, s29, v3")
    a("v_lshrrev_b32 v10, 1, v9")
    a("v_and_b32 v10, 7, v10")
    a("v_lshlrev_b32 v9, 7, v9")
    for s in range(4):
        a(f"v_add_u32 v11, {2 * s}, v4")
        a("v_xor_b32 v11, v11, v10")
        a(f"v_lshl_add_u32 v{12 + s}, v11, 4, v9")
    a("v_lshrrev_b32 v9, 2, v1")
    a("v_and_b32 v9, 3, v9")
    a("v_lshrrev_b32 v10, 1, v9")
    a("v_xor_b32 v10, s28, v10")
    a("v_lshlrev_b32 v10, 6, v10")
    a("v_lshl_add_u32 v9, v4, 3, v9")
    a("v_lshl_add_u32 v10, v9, 7, v10")
    a("v_lshrrev_b32 v9, 4, v1")
    a("v_and_b32 v9, 1, v9")
    a("v_lshl_add_u32 v10, v9, 5, v10")
    a("v_and_b32 v9, 3, v1")
    a("v_lshl_add_u32 v10, v9, 3, v10")
    a("v_add_u32 v10, 0x8000, v10")
    a("v_add_u32 v11, 0xc000, v10")
    a("v_lshlrev_b32 v5, 5, v3")
    a("v_lshl_add_u32 v5, v4, 4, v5")
    a("v_and_b32 v6, 15, v1")
    a("v_lshlrev_b32 v6, 5, v6")
    a("v_lshl_add_u32 v6, v4, 4, v6")
    a("v_lshrrev_b32 v9, 4, v3")
    a("v_lshl_add_u32 v6, v9, 16, v6")
    ACC = 16
    FR = 64
    for r in range(48):
        a(f"v_mov_b32 v{ACC + r}, 0")
    a("s_lshl_b32 s31, s24, 18")
    a("s_lshl_b32 s32, s28, 17")
    a("s_add_u32 s31, s31, s32")
    a("s_lshl_b32 s32, s25, 11")
    a("s_add_u32 s31, s31, s32")
    a("s_lshl_b32 s32, s27, 10")
    a("s_add_u32 s31, s31, s32")
    a("s_add_u32 s32, s31, 65536")
    a(f"s_add_u32 s33, s31, {WS_K}")
    a(f"s_add_u32 s34, s33, 65536")
    a(f"s_add_u32 s35, s31, {WS_V}")
    a("s_waitcnt lgkmcnt(0)")
    srd(a, SWS, 8, WS_BYTES)

    def reads(c, s):
        b = c % 4
        f = FR + ((4 * c + s) % 2) * 16
        a(f"ds_read_b128 {vr(f, 4)}, v{12 + s} offset:{b * 8192}")
        breg = 10 if b < 2 else 11
        boff = (b % 2) * 24576 + s * 2048
        for p in range(3):
            a(f"ds_read_b64_tr_b16 {vr(f + 4 + 4 * p, 2)}, v{breg} offset:{boff + p * 8192}")
            a(f"ds_read_b64_tr_b16 {vr(f + 6 + 4 * p, 2)}, v{breg} offset:{boff + p * 8192 + 512}")

    for c in range(8):
        a("s_barrier")
        if c in (0, 1, 4, 7):
            a.stamp()
        reads(c, 0)
        for s in range(4):
            if s + 1 < 4:
                reads(c, s + 1)
                a("s_waitcnt lgkmcnt(7)")
            else:
                a("s_waitcnt lgkmcnt(0)")
            f = FR + ((4 * c + s) % 2) * 16
            af = vr(f, 4)
            a(f"v_mfma_f32_32x32x16_bf16 {vr(ACC, 16)}, {vr(f + 4, 4)}, {af}, {vr(ACC, 16)}")
            a(f"v_mfma_f32_32x32x16_bf16 {vr(ACC + 16, 16)}, {vr(f + 8, 4)}, {af}, {vr(ACC + 16, 16)}")
            a(f"v_mfma_f32_32x32x16_bf16 {vr(ACC + 32, 16)}, {af}, {vr(f + 12, 4)}, {vr(ACC + 32, 16)}")
    a("s_nop 7")
    a("s_nop 3")
    T = 64
    for tile, soffs in ((0, (31, 32)), (1, (33, 34))):
        for hd in range(2):
            base = ACC + 16 * tile + 8 * hd
            t = T + 4 * (2 * tile + hd)
            for q in range(4):
                a(f"v_cvt_pk_bf16_f32 v{t + q}, v{base + 2 * q}, v{base + 2 * q + 1}")
            a(f"buffer_store_dwordx4 {vr(t, 4)}, v5, s[{SWS}:{SWS + 3}], s{soffs[hd]} offen")
    for u in range(2):
        base = ACC + 32 + 8 * u
        t = T + 16 + 4 * u
        for q in range(4):
            a(f"v_cvt_pk_bf16_f32 v{t + q}, v{base + 2 * q}, v{base + 2 * q + 1}")
        a(f"buffer_store_dwordx4 {vr(t, 4)}, v6, s[{SWS}:{SWS + 3}], s35 offen offset:{u * 512}")
    a.diag_end(0, 26, "K1_END")
    a("s_endpgm")
    a.label("K1_LOADER")
    a("s_sub_u32 s26, s26, 4")
    a("v_lshrrev_b32 v5, 3, v1")
    a("v_and_b32 v6, 7, v1")
    a("s_and_b32 s27, s26, 1")
    a("v_lshrrev_b32 v7, 4, v1")
    a("s_lshl_b32 s29, s27, 2")
    a("v_add_u32 v7, s29, v7")
    a("v_xor_b32 v7, v7, v6")
    a("v_lshlrev_b32 v7, 4, v7")
    a("v_lshl_add_u32 v7, v5, 10, v7")
    a("v_lshrrev_b32 v8, 4, v1")
    a("v_and_b32 v8, 1, v8")
    a("v_lshlrev_b32 v8, 2, v8")
    a("v_xor_b32 v8, v8, v6")
    a("v_lshlrev_b32 v8, 4, v8")
    a("v_mul_u32_u24 v9, 3072, v5")
    a("v_add_u32 v8, v8, v9")
    a("s_lshl_b32 s29, s25, 16")
    a("s_lshl_b32 s30, s26, 13")
    a("s_add_u32 s29, s29, s30")
    a("s_lshl_b32 s30, s26, 10")
    a("s_mul_i32 s31, s26, 49152")
    a("s_lshl_b32 s32, s24, 7")
    a("s_add_u32 s31, s31, s32")
    a("s_lshl_b32 s32, s26, 11")
    a("s_add_u32 s32, s32, 0x8000")
    a("s_waitcnt lgkmcnt(0)")
    srd(a, SX, 4, 2048 * 512 * 2)
    srd(a, SW, 6, 512 * 1536 * 2)

    a("s_lshr_b32 s39, s2, 3")

    def dma(c):
        b = c % 4
        a(f"s_add_u32 s36, s39, {c}")
        a("s_and_b32 s36, s36, 7")
        a("s_lshl_b32 s37, s36, 7")
        a("s_add_u32 s37, s37, s29")
        a("s_mul_i32 s38, s36, 196608")
        a("s_add_u32 s38, s38, s31")
        for i2 in range(2):
            a(f"s_add_u32 s33, s37, {i2 * 32768}")
            a(f"s_add_u32 m0, s30, {b * 8192 + i2 * 4096}")
            a("s_nop 0")
            a(f"buffer_load_dwordx4 v7, s[{SX}:{SX + 3}], s33 offen lds")
        for p in range(3):
            for i2 in range(2):
                a(f"s_add_u32 s33, s38, {i2 * 8 * 3072 + p * 1024}")
                a(f"s_add_u32 m0, s32, {b * 24576 + p * 8192 + i2 * 1024}")
                a("s_nop 0")
                a(f"buffer_load_dwordx4 v8, s[{SW}:{SW + 3}], s33 offen lds")

    dma(0)
    dma(1)
    issued = 2
    for c in range(8):
        a(f"s_waitcnt vmcnt({8 * (issued - c - 1)})")
        a("s_barrier")
        while issued < min(c + 4, 8):
            dma(issued)
            issued += 1
    a.label("K1_END")
    a("s_endpgm")
    return name, 96, 40


def gen_k2(a):
    name = "attn_kernel"
    kernel_head(a, name)
    SWS = 12
    MK = 16
    a("s_cmp_ge_u32 s2, 256")
    a("s_cbranch_scc1 K2_END")
    a.diag_begin()
    a("s_load_dwordx2 s[8:9], s[0:1], 40")
    a("v_lshrrev_b32 v2, 6, v0")
    a("v_and_b32 v1, 63, v0")
    a("s_and_b32 s50, s2, 1")
    a("s_lshl_b32 s50, s50, 4")
    a("s_bfe_u32 s51, s2, 0x40003")
    a("s_add_u32 s50, s50, s51")
    a("v_readfirstlane_b32 s52, v2")
    a("s_bfe_u32 s51, s2, 0x20001")
    a("s_lshl_b32 s51, s51, 1")
    a("s_lshr_b32 s53, s2, 7")
    a("s_add_u32 s51, s51, s53")
    a("v_and_b32 v3, 31, v1")
    a("v_lshrrev_b32 v4, 5, v1")
    a("v_lshlrev_b32 v5, 5, v3")
    a("v_lshl_add_u32 v5, v4, 4, v5")
    a("v_lshlrev_b32 v2, 4, v1")
    a("s_lshl_b32 s53, s50, 16")
    a("s_lshl_b32 s56, s51, 3")
    a("s_add_u32 s51, s56, s52")
    a("s_lshl_b32 s54, s51, 10")
    a("s_add_u32 s54, s54, s53")
    a("s_lshl_b32 s57, s52, 1")
    a("s_add_u32 s58, s56, s57")
    a("s_sub_i32 s58, s58, 8")
    a("s_add_i32 s59, s58, 1")
    a("s_max_i32 s58, s58, 0")
    a("s_max_i32 s59, s59, 0")
    a("s_lshl_b32 s58, s58, 10")
    a("s_lshl_b32 s59, s59, 10")
    a("s_add_u32 s58, s58, s53")
    a("s_add_u32 s59, s59, s53")
    a("s_lshl_b32 s57, s57, 10")
    a("s_lshl_b32 s60, s52, 10")
    a("v_add_u32 v6, s60, v5")
    a("s_waitcnt lgkmcnt(0)")
    srd(a, SWS, 8, WS_BYTES)
    QF, ONES, MPK, OA, LA = 8, 12, 16, 24, 40
    S0 = 56
    T = 184
    KF = 200
    PB = 236
    for (sg, ws, lo) in ((58, WS_K, 0), (59, WS_K, 1024), (58, WS_V, 16384), (59, WS_V, 17408)):
        a(f"s_add_u32 s61, s{sg}, {ws}")
        a(f"s_add_u32 m0, s57, {lo}")
        a("s_nop 0")
        a(f"buffer_load_dwordx4 v2, s[{SWS}:{SWS + 3}], s61 offen lds")
    a(f"buffer_load_dwordx4 {vr(QF, 4)}, v5, s[{SWS}:{SWS + 3}], s54 offen")
    for r in range(4):
        a(f"v_mov_b32 v{ONES + r}, 0x3f803f80")
    a("v_lshlrev_b32 v7, 2, v4")
    a("v_sub_u32 v7, v3, v7")
    for r in range(16):
        c = 8 * (r // 4) + (r % 4)
        a(f"v_cmp_le_i32 s[{MK + 2 * r}:{MK + 2 * r + 1}], {c}, v7")
    a("v_mov_b32 v3, 0xffff")
    a("v_mov_b32 v7, 0xffff0000")
    a("s_nop 1")
    for j in range(8):
        a(f"v_cndmask_b32 v{MPK + j}, 0, v3, s[{MK + 4 * j}:{MK + 4 * j + 1}]")
        a(f"v_cndmask_b32 v{PB + j}, 0, v7, s[{MK + 4 * j + 2}:{MK + 4 * j + 3}]")
    for j in range(8):
        a(f"v_or_b32 v{MPK + j}, v{MPK + j}, v{PB + j}")
    for r in range(32):
        a(f"v_mov_b32 v{OA + r}, 0")
    a("v_mov_b32 v3, 0xff800000")
    a("v_mov_b32 v7, 0xff800000")
    a("v_mov_b32 v4, 0x3eb8aa3b")
    a.stamp()
    a("s_waitcnt vmcnt(0)")
    a("s_barrier")
    a.stamp()
    korder = [0, 8, 1, 2, 3, 4, 5, 6, 7]
    for i in korder:
        a(f"ds_read_b128 {vr(KF + 4 * i, 4)}, v6 offset:{i * 1024}")

    def sdst(i):
        return T if i == 0 else (S0 if i == 8 else S0 + 16 * i)

    def smfma(n):
        i = korder[n]
        return [f"s_waitcnt lgkmcnt({8 - n})",
                f"v_mfma_f32_32x32x16_bf16 {vr(sdst(i), 16)}, {vr(KF + 4 * i, 4)}, {vr(QF, 4)}, 0"]

    vorder = [8, 0, 1, 2, 3, 4, 5, 6, 7]

    def vread(n):
        i = vorder[n]
        b = KF + 8 * (n % 4)
        return [f"ds_read_b128 {vr(b + 4 * u, 4)}, v6 offset:{16384 + i * 1024 + u * 512}" for u in range(2)]

    def emit_inter(valu, extra, start=2):
        n = len(extra)
        if n == 0:
            for l in valu:
                a(l)
            return
        step = max(1, (len(valu) - start) // n)
        k = 0
        for idx, l in enumerate(valu):
            a(l)
            if k < n and idx >= start and (idx - start) % step == 0:
                for x in extra[k]:
                    a(x)
                k += 1
        while k < n:
            for x in extra[k]:
                a(x)
            k += 1

    def proc(src):
        o = []
        for q in range(8):
            m = (3, 7)[q & 1]
            o.append(f"v_max3_f32 v{m}, v{m}, v{src + 2 * q}, v{src + 2 * q + 1}")
            o.append(f"v_cvt_pk_bf16_f32 v{src + 2 * q}, 0, v{src + 2 * q}")
            o.append(f"v_cvt_pk_bf16_f32 v{src + 2 * q + 1}, 0, v{src + 2 * q + 1}")
        return o

    for n in range(4):
        for l in smfma(n):
            a(l)
    a("s_nop 7")
    a("s_cmp_ge_u32 s51, 8")
    a("s_cbranch_scc1 K2_HAVE0")
    for r in range(16):
        a(f"v_mov_b32 v{T + r}, 0xff800000")
    a.label("K2_HAVE0")
    val = [f"v_cndmask_b32 v{S0 + r}, v{T + r}, v{S0 + r}, s[{MK + 2 * r}:{MK + 2 * r + 1}]" for r in range(16)] + proc(S0)
    emit_inter(val, [smfma(4), smfma(5)])
    for i in range(1, 8):
        extra = []
        if i + 5 < 9:
            extra.append(smfma(i + 5))
        if i == 4:
            extra += [vread(0), vread(1)]
        if i == 5:
            extra += [vread(2), vread(3)]
        for e in extra:
            for l in e:
                a(l)
        a(f"s_cmp_ge_u32 s51, {8 - i}")
        a(f"s_cbranch_scc1 K2_T{i}_OK")
        for r in range(16):
            a(f"v_mov_b32 v{S0 + 16 * i + r}, 0xff800000")
        a(f"s_branch K2_T{i}_DONE")
        a.label(f"K2_T{i}_OK")
        for l in proc(S0 + 16 * i):
            a(l)
        a.label(f"K2_T{i}_DONE")
    a.stamp()
    a("v_max_f32 v3, v3, v7")
    a("v_mov_b32 v7, v3")
    a("s_nop 1")
    a("v_permlane32_swap_b32 v3, v7")
    a("s_nop 1")
    a("v_max_f32 v3, v3, v7")
    a("v_cvt_pk_bf16_f32 v3, 0, v3")
    a("v_mul_f32 v3, v4, v3")
    a("v_sub_f32 v3, 0, v3")

    def expo(src, pdst):
        o = []
        for r in range(16):
            o.append(f"v_fma_f32 v{src + r}, v{src + r}, v4, v3")
        for r in range(16):
            o.append(f"v_exp_f32 v{src + r}, v{src + r}")
        o.append("s_nop 0")
        for q in range(8):
            o.append(f"v_cvt_pk_bf16_f32 v{pdst + q}, v{src + 2 * q}, v{src + 2 * q + 1}")
        return o

    def pv(n, psrc):
        b = KF + 8 * (n % 4)
        return [[f"v_mfma_f32_32x32x16_bf16 {vr(OA, 16)}, {vr(b + 4 * u, 4)}, {vr(psrc + 4 * u, 4)}, {vr(OA, 16)}"] for u in range(2)]

    def lsum(psrc):
        return [[f"v_mfma_f32_32x32x16_bf16 {vr(LA, 16)}, {vr(ONES, 4)}, {vr(psrc + 4 * u, 4)}, {vr(LA, 16)}"] for u in range(2)]

    for l in expo(S0, T):
        a(l)
    for q in range(8):
        a(f"v_and_b32 v{PB + q}, v{T + q}, v{MPK + q}")
        a(f"v_bfi_b32 v{PB + 8 + q}, v{MPK + q}, 0, v{T + q}")
    pend = [["s_waitcnt lgkmcnt(4)"] + lsum(T)[0], lsum(T)[1], pv(0, PB)[0], pv(0, PB)[1], pv(1, PB + 8)[0], pv(1, PB + 8)[1] + vread(4) + vread(5)]
    pbufs = [T + 8, S0]
    for i in range(1, 8):
        n = i + 1
        pb = pbufs[i % 2] + (8 if (i % 2 == 0 and False) else 0)
        emit_inter(expo(S0 + 16 * i, pb), pend)
        issued = min(n + 3, 8)
        pend = [[f"s_waitcnt lgkmcnt({2 * (issued - n)})"] + lsum(pb)[0], lsum(pb)[1], pv(n, pb)[0], pv(n, pb)[1] + (vread(n + 4) if n + 4 <= 8 else [])]
    a("s_nop 1")
    for g in pend:
        for l in g:
            a(l)
    a("s_nop 7")
    a("s_nop 7")
    a(f"v_rcp_f32 v7, v{LA}")
    a("s_nop 0")
    for r in range(8):
        a(f"v_mul_f32 v{OA + r}, v{OA + r}, v7")
    for q in range(4):
        a(f"v_cvt_pk_bf16_f32 v{T + q}, v{OA + 2 * q}, v{OA + 2 * q + 1}")
    a("s_lshl_b32 s55, s51, 5")
    a("s_add_u32 s55, s55, s50")
    a("s_lshl_b32 s55, s55, 10")
    a(f"s_add_u32 s55, s55, {WS_O}")
    a(f"buffer_store_dwordx4 {vr(T, 4)}, v5, s[{SWS}:{SWS + 3}], s55 offen")
    a("s_sub_u32 s63, s52, 7")
    a.diag_end(1, 52 if DIAG != 2 else 63, "K2_END")
    a.label("K2_END")
    a("s_endpgm")
    return name, 252, 80


def gen_k3(a):
    name = "oproj_kernel"
    kernel_head(a, name)
    SW, SWS, SO = 12, 16, 20
    a("s_cmp_ge_u32 s2, 256")
    a("s_cbranch_scc1 K3_END")
    a.diag_begin()
    a("s_load_dwordx4 s[4:7], s[0:1], 16")
    a("s_load_dwordx2 s[8:9], s[0:1], 40")
    a("v_lshrrev_b32 v2, 6, v0")
    a("v_and_b32 v1, 63, v0")
    a("s_and_b32 s25, s2, 1")
    a("s_lshl_b32 s25, s25, 2")
    a("s_bfe_u32 s24, s2, 0x20003")
    a("s_add_u32 s25, s25, s24")
    a("v_readfirstlane_b32 s26, v2")
    a("s_bfe_u32 s24, s2, 0x20001")
    a("s_lshl_b32 s24, s24, 3")
    a("s_lshr_b32 s27, s2, 5")
    a("s_add_u32 s24, s24, s27")
    a("s_cmp_ge_u32 s26, 4")
    a("s_cbranch_scc1 K3_LOADER")
    a("v_and_b32 v3, 31, v1")
    a("v_lshrrev_b32 v4, 5, v1")
    a("s_and_b32 s27, s26, 1")
    a("s_lshr_b32 s28, s26, 1")
    a("v_lshlrev_b32 v11, 5, v3")
    a("v_lshl_add_u32 v11, v4, 4, v11")
    a("s_lshl_b32 s29, s27, 15")
    a("v_add_u32 v11, s29, v11")
    a("v_lshrrev_b32 v8, 2, v1")
    a("v_and_b32 v8, 3, v8")
    a("v_lshrrev_b32 v9, 1, v8")
    a("v_xor_b32 v9, s28, v9")
    a("v_lshlrev_b32 v9, 6, v9")
    a("v_lshl_add_u32 v8, v4, 2, v8")
    a("v_lshl_add_u32 v8, v8, 7, v9")
    a("v_lshrrev_b32 v9, 4, v1")
    a("v_and_b32 v9, 1, v9")
    a("v_lshl_add_u32 v8, v9, 5, v8")
    a("v_and_b32 v9, 1, v1")
    a("v_lshl_add_u32 v8, v9, 4, v8")
    a("v_lshrrev_b32 v9, 1, v1")
    a("v_and_b32 v9, 1, v9")
    a("v_lshl_add_u32 v8, v9, 3, v8")
    a("v_add_u32 v8, 0x10000, v8")
    a("v_lshlrev_b32 v10, 10, v3")
    a("v_lshl_add_u32 v10, v4, 4, v10")
    a("s_lshl_b32 s31, s24, 16")
    a("s_lshl_b32 s32, s27, 15")
    a("s_add_u32 s31, s31, s32")
    a("s_lshl_b32 s32, s25, 7")
    a("s_add_u32 s31, s31, s32")
    a("s_lshl_b32 s32, s28, 6")
    a("s_add_u32 s31, s31, s32")
    ACC = 16
    FR = 32
    for r in range(16):
        a(f"v_mov_b32 v{ACC + r}, 0")
    a("s_waitcnt lgkmcnt(0)")
    srd(a, SO, 6, 2048 * 512 * 2)

    def reads(s):
        f = FR + (s % 4) * 8
        a(f"ds_read_b128 {vr(f, 4)}, v11 offset:{s * 1024}")
        a(f"ds_read_b64_tr_b16 {vr(f + 4, 2)}, v8 offset:{s * 2048}")
        a(f"ds_read_b64_tr_b16 {vr(f + 6, 2)}, v8 offset:{s * 2048 + 1024}")

    NPH = 8
    SP = 32 // NPH
    for j in range(NPH):
        a("s_barrier")
        if j in (0, NPH - 1):
            a.stamp()
        pre = min(3, SP)
        for s in range(SP * j, SP * j + pre):
            reads(s)
        for s in range(SP * j, SP * j + SP):
            if s + 3 < SP * j + SP:
                reads(s + 3)
                a("s_waitcnt lgkmcnt(9)")
            else:
                a(f"s_waitcnt lgkmcnt({3 * (SP * j + SP - 1 - s)})")
            f = FR + (s % 4) * 8
            a(f"v_mfma_f32_32x32x16_bf16 {vr(ACC, 16)}, {vr(f + 4, 4)}, {vr(f, 4)}, {vr(ACC, 16)}")
    a("s_nop 7")
    a("s_nop 7")
    T = 32
    for u in range(2):
        for q in range(4):
            a(f"v_cvt_pk_bf16_f32 v{T + 4 * u + q}, v{ACC + 8 * u + 2 * q}, v{ACC + 8 * u + 2 * q + 1}")
        a(f"buffer_store_dwordx4 {vr(T + 4 * u, 4)}, v10, s[{SO}:{SO + 3}], s31 offen offset:{u * 32}")
    a.diag_end(2, 26, "K3_END")
    a("s_endpgm")
    a.label("K3_LOADER")
    a("s_sub_u32 s26, s26, 4")
    a("v_lshlrev_b32 v5, 4, v1")
    a("v_lshrrev_b32 v6, 4, v1")
    a("v_and_b32 v6, 1, v6")
    a("v_lshlrev_b32 v6, 2, v6")
    a("v_and_b32 v7, 7, v1")
    a("v_xor_b32 v6, v6, v7")
    a("v_lshlrev_b32 v6, 4, v6")
    a("v_lshrrev_b32 v7, 3, v1")
    a("v_lshl_add_u32 v6, v7, 10, v6")
    a("s_and_b32 s27, s26, 1")
    a("s_lshr_b32 s28, s26, 1")
    a("s_lshl_b32 s33, s24, 16")
    a("s_lshl_b32 s34, s27, 15")
    a("s_add_u32 s33, s33, s34")
    a("s_lshl_b32 s35, s28, 11")
    a("s_add_u32 s33, s33, s35")
    a(f"s_add_u32 s33, s33, {WS_O}")
    a("s_add_u32 s34, s34, s35")
    a("s_lshl_b32 s35, s26, 14")
    a("s_lshl_b32 s36, s25, 7")
    a("s_add_u32 s35, s35, s36")
    a("s_lshl_b32 s36, s26, 11")
    a("s_add_u32 s36, s36, 0x10000")
    a("s_waitcnt lgkmcnt(0)")
    srd(a, SW, 4, 512 * 512 * 2)
    srd(a, SWS, 8, WS_BYTES)
    def dma3(j):
        for i in range(2):
            a(f"s_add_u32 s37, s33, {j * 4096 + i * 1024}")
            a(f"s_add_u32 m0, s34, {j * 4096 + i * 1024}")
            a("s_nop 0")
            a(f"buffer_load_dwordx4 v5, s[{SWS}:{SWS + 3}], s37 offen lds")
        for i in range(2):
            a(f"s_add_u32 s37, s35, {j * 65536 + i * 8192}")
            a(f"s_add_u32 m0, s36, {j * 8192 + i * 1024}")
            a("s_nop 0")
            a(f"buffer_load_dwordx4 v6, s[{SW}:{SW + 3}], s37 offen lds")

    LA3 = 4
    for j in range(LA3):
        dma3(j)
    for j in range(NPH):
        issued = min(j + LA3, NPH)
        a(f"s_waitcnt vmcnt({4 * (issued - j - 1)})")
        a("s_barrier")
        if j + LA3 < NPH:
            dma3(j + LA3)
    a.label("K3_END")
    a("s_endpgm")
    return name, 64, 40


def main():
    a = Asm()
    hdr = open("standalone__sliding_block__prompt.s.ref").read().split("\n")
    for line in hdr:
        if line.startswith("; @launch") or not line.startswith(";"):
            break
        a.raw(line)
    a.raw("; @launch kernel=qkv_kernel grid=(256,1,1) block=(512,1,1) lds=131072")
    a.raw("; @launch kernel=attn_kernel grid=(256,1,1) block=(512,1,1) lds=33280")
    a.raw("; @launch kernel=oproj_kernel grid=(256,1,1) block=(512,1,1) lds=131072")
    a.raw('.amdgcn_target "amdgcn-amd-amdhsa--gfx950"')
    a.raw(".text")
    ks = [gen_k1(a), gen_k2(a), gen_k3(a)]
    a.raw('.section .rodata,"a"')
    for name, v, s in ks:
        kd(a, name, v, s)
    open(OUT, "w").write(a.text())


main()
```

```python
import sys

OUT = sys.argv[1] if len(sys.argv) > 1 else "standalone__sliding_block__prompt.s"

MB = 1 << 20
WS_Q, WS_K, WS_V, WS_O = 0, 2 * MB, 4 * MB, 6 * MB
WS_BYTES = 8 * MB


import os
DIAG = int(os.environ.get("DIAG", "0"))


class Asm:
    def __init__(self):
        self.lines = []
        self.nst = 0

    def stamp(self):
        if DIAG:
            i = self.nst
            self.nst += 1
            self(f"s_memtime s[{82 + 2 * i}:{83 + 2 * i}]")

    def diag_begin(self):
        if DIAG:
            self.nst = 0
            self("s_memrealtime s[100:101]")
            self.stamp()

    def diag_end(self, kidx, wave_sreg, lab):
        if not DIAG:
            return
        self.stamp()
        self("s_waitcnt vmcnt(0) lgkmcnt(0)")
        self.stamp()
        self("s_memrealtime s[98:99]")
        self("s_load_dwordx2 s[76:77], s[0:1], 40")
        self("s_waitcnt lgkmcnt(0)")
        self(f"s_cmp_lg_u32 s{wave_sreg}, 0")
        self(f"s_cbranch_scc1 {lab}")
        self("s_and_b32 s77, s77, 0xffff")
        self("s_mov_b32 s78, 0x2000000")
        self("s_mov_b32 s79, 0x00020000")
        self("s_lshl_b32 s80, s2, 7")
        self(f"s_add_u32 s80, s80, {16 * MB + kidx * 65536}")
        self("v_mov_b32 v1, 0")
        self("v_mov_b32 v2, s100")
        self("buffer_store_dword v2, v1, s[76:79], s80 offen")
        self("v_mov_b32 v2, s98")
        self("buffer_store_dword v2, v1, s[76:79], s80 offen offset:4")
        for i in range(self.nst):
            self(f"s_sub_u32 s81, s{82 + 2 * i}, s82")
            self("v_mov_b32 v2, s81")
            self(f"buffer_store_dword v2, v1, s[76:79], s80 offen offset:{8 + 4 * i}")

    def __call__(self, s):
        self.lines.append("    " + s)

    def label(self, l):
        self.lines.append(l + ":")

    def raw(self, s):
        self.lines.append(s)

    def text(self):
        return "\n".join(self.lines) + "\n"


def vr(base, n):
    return f"v[{base}:{base + n - 1}]"


def srd(a, d, ptr_lo, nbytes):
    a(f"s_mov_b32 s{d}, s{ptr_lo}")
    a(f"s_and_b32 s{d + 1}, s{ptr_lo + 1}, 0xffff")
    a(f"s_mov_b32 s{d + 2}, {nbytes:#x}")
    a(f"s_mov_b32 s{d + 3}, 0x00020000")


def kernel_head(a, name):
    a.raw(f".globl {name}")
    a.raw(".p2align 8")
    a.raw(f".type {name},@function")
    a.label(name)


def kd(a, name, vgpr, sgpr):
    acc = (vgpr + 3) // 4 * 4
    a.raw(".p2align 6")
    a.raw(f".amdhsa_kernel {name}")
    a.raw(f"  .amdhsa_next_free_vgpr {vgpr}")
    a.raw(f"  .amdhsa_next_free_sgpr {102 if DIAG else sgpr}")
    a.raw(f"  .amdhsa_accum_offset {acc}")
    a.raw("  .amdhsa_group_segment_fixed_size 0")
    a.raw("  .amdhsa_kernarg_size 48")
    a.raw("  .amdhsa_user_sgpr_count 2")
    a.raw("  .amdhsa_user_sgpr_kernarg_segment_ptr 1")
    a.raw("  .amdhsa_system_sgpr_workgroup_id_x 1")
    a.raw(".end_amdhsa_kernel")


def gen_k1(a):
    name = "qkv_kernel"
    kernel_head(a, name)
    SX, SW, SWS = 12, 16, 20
    a("s_cmp_ge_u32 s2, 256")
    a("s_cbranch_scc1 K1_END")
    a.diag_begin()
    a("s_load_dwordx4 s[4:7], s[0:1], 0")
    a("s_load_dwordx2 s[8:9], s[0:1], 40")
    a("v_lshrrev_b32 v2, 6, v0")
    a("v_and_b32 v1, 63, v0")
    a("s_and_b32 s24, s2, 1")
    a("s_lshl_b32 s24, s24, 2")
    a("s_bfe_u32 s25, s2, 0x20003")
    a("s_add_u32 s24, s24, s25")
    a("v_readfirstlane_b32 s26, v2")
    a("s_bfe_u32 s25, s2, 0x20001")
    a("s_lshl_b32 s25, s25, 3")
    a("s_lshr_b32 s27, s2, 5")
    a("s_add_u32 s25, s25, s27")
    a("s_cmp_ge_u32 s26, 4")
    a("s_cbranch_scc1 K1_LOADER")
    a("v_and_b32 v3, 31, v1")
    a("v_lshrrev_b32 v4, 5, v1")
    a("s_and_b32 s27, s26, 1")
    a("s_lshr_b32 s28, s26, 1")
    a("s_lshl_b32 s29, s27, 5")
    a("v_add_u32 v9, s29, v3")
    a("v_lshrrev_b32 v10, 1, v9")
    a("v_and_b32 v10, 7, v10")
    a("v_lshlrev_b32 v9, 7, v9")
    for s in range(4):
        a(f"v_add_u32 v11, {2 * s}, v4")
        a("v_xor_b32 v11, v11, v10")
        a(f"v_lshl_add_u32 v{12 + s}, v11, 4, v9")
    a("v_lshrrev_b32 v9, 2, v1")
    a("v_and_b32 v9, 3, v9")
    a("v_lshrrev_b32 v10, 1, v9")
    a("v_xor_b32 v10, s28, v10")
    a("v_lshlrev_b32 v10, 6, v10")
    a("v_lshl_add_u32 v9, v4, 3, v9")
    a("v_lshl_add_u32 v10, v9, 7, v10")
    a("v_lshrrev_b32 v9, 4, v1")
    a("v_and_b32 v9, 1, v9")
    a("v_lshl_add_u32 v10, v9, 5, v10")
    a("v_and_b32 v9, 3, v1")
    a("v_lshl_add_u32 v10, v9, 3, v10")
    a("v_add_u32 v10, 0x8000, v10")
    a("v_add_u32 v11, 0xc000, v10")
    a("v_lshlrev_b32 v5, 5, v3")
    a("v_lshl_add_u32 v5, v4, 4, v5")
    a("v_and_b32 v6, 15, v1")
    a("v_lshlrev_b32 v6, 5, v6")
    a("v_lshl_add_u32 v6, v4, 4, v6")
    a("v_lshrrev_b32 v9, 4, v3")
    a("v_lshl_add_u32 v6, v9, 16, v6")
    ACC = 16
    FR = 64
    for r in range(48):
        a(f"v_mov_b32 v{ACC + r}, 0")
    a("s_lshl_b32 s31, s24, 18")
    a("s_lshl_b32 s32, s28, 17")
    a("s_add_u32 s31, s31, s32")
    a("s_lshl_b32 s32, s25, 11")
    a("s_add_u32 s31, s31, s32")
    a("s_lshl_b32 s32, s27, 10")
    a("s_add_u32 s31, s31, s32")
    a("s_add_u32 s32, s31, 65536")
    a(f"s_add_u32 s33, s31, {WS_K}")
    a(f"s_add_u32 s34, s33, 65536")
    a(f"s_add_u32 s35, s31, {WS_V}")
    a("s_waitcnt lgkmcnt(0)")
    srd(a, SWS, 8, WS_BYTES)

    def reads(c, s):
        b = c % 4
        f = FR + ((4 * c + s) % 2) * 16
        a(f"ds_read_b128 {vr(f, 4)}, v{12 + s} offset:{b * 8192}")
        breg = 10 if b < 2 else 11
        boff = (b % 2) * 24576 + s * 2048
        for p in range(3):
            a(f"ds_read_b64_tr_b16 {vr(f + 4 + 4 * p, 2)}, v{breg} offset:{boff + p * 8192}")
            a(f"ds_read_b64_tr_b16 {vr(f + 6 + 4 * p, 2)}, v{breg} offset:{boff + p * 8192 + 512}")

    for c in range(8):
        a("s_barrier")
        if c in (0, 1, 4, 7):
            a.stamp()
        reads(c, 0)
        for s in range(4):
            if s + 1 < 4:
                reads(c, s + 1)
                a("s_waitcnt lgkmcnt(7)")
            else:
                a("s_waitcnt lgkmcnt(0)")
            f = FR + ((4 * c + s) % 2) * 16
            af = vr(f, 4)
            a(f"v_mfma_f32_32x32x16_bf16 {vr(ACC, 16)}, {vr(f + 4, 4)}, {af}, {vr(ACC, 16)}")
            a(f"v_mfma_f32_32x32x16_bf16 {vr(ACC + 16, 16)}, {vr(f + 8, 4)}, {af}, {vr(ACC + 16, 16)}")
            a(f"v_mfma_f32_32x32x16_bf16 {vr(ACC + 32, 16)}, {af}, {vr(f + 12, 4)}, {vr(ACC + 32, 16)}")
    a("s_nop 7")
    a("s_nop 3")
    T = 64
    for tile, soffs in ((0, (31, 32)), (1, (33, 34))):
        for hd in range(2):
            base = ACC + 16 * tile + 8 * hd
            t = T + 4 * (2 * tile + hd)
            for q in range(4):
                a(f"v_cvt_pk_bf16_f32 v{t + q}, v{base + 2 * q}, v{base + 2 * q + 1}")
            a(f"buffer_store_dwordx4 {vr(t, 4)}, v5, s[{SWS}:{SWS + 3}], s{soffs[hd]} offen")
    for u in range(2):
        base = ACC + 32 + 8 * u
        t = T + 16 + 4 * u
        for q in range(4):
            a(f"v_cvt_pk_bf16_f32 v{t + q}, v{base + 2 * q}, v{base + 2 * q + 1}")
        a(f"buffer_store_dwordx4 {vr(t, 4)}, v6, s[{SWS}:{SWS + 3}], s35 offen offset:{u * 512}")
    a.diag_end(0, 26, "K1_END")
    a("s_endpgm")
    a.label("K1_LOADER")
    a("s_sub_u32 s26, s26, 4")
    a("v_lshrrev_b32 v5, 3, v1")
    a("v_and_b32 v6, 7, v1")
    a("s_and_b32 s27, s26, 1")
    a("v_lshrrev_b32 v7, 4, v1")
    a("s_lshl_b32 s29, s27, 2")
    a("v_add_u32 v7, s29, v7")
    a("v_xor_b32 v7, v7, v6")
    a("v_lshlrev_b32 v7, 4, v7")
    a("v_lshl_add_u32 v7, v5, 10, v7")
    a("v_lshrrev_b32 v8, 4, v1")
    a("v_and_b32 v8, 1, v8")
    a("v_lshlrev_b32 v8, 2, v8")
    a("v_xor_b32 v8, v8, v6")
    a("v_lshlrev_b32 v8, 4, v8")
    a("v_mul_u32_u24 v9, 3072, v5")
    a("v_add_u32 v8, v8, v9")
    a("s_lshl_b32 s29, s25, 16")
    a("s_lshl_b32 s30, s26, 13")
    a("s_add_u32 s29, s29, s30")
    a("s_lshl_b32 s30, s26, 10")
    a("s_mul_i32 s31, s26, 49152")
    a("s_lshl_b32 s32, s24, 7")
    a("s_add_u32 s31, s31, s32")
    a("s_lshl_b32 s32, s26, 11")
    a("s_add_u32 s32, s32, 0x8000")
    a("s_waitcnt lgkmcnt(0)")
    srd(a, SX, 4, 2048 * 512 * 2)
    srd(a, SW, 6, 512 * 1536 * 2)

    a("s_lshr_b32 s39, s2, 3")

    def dma(c):
        b = c % 4
        a(f"s_add_u32 s36, s39, {c}")
        a("s_and_b32 s36, s36, 7")
        a("s_lshl_b32 s37, s36, 7")
        a("s_add_u32 s37, s37, s29")
        a("s_mul_i32 s38, s36, 196608")
        a("s_add_u32 s38, s38, s31")
        for i2 in range(2):
            a(f"s_add_u32 s33, s37, {i2 * 32768}")
            a(f"s_add_u32 m0, s30, {b * 8192 + i2 * 4096}")
            a("s_nop 0")
            a(f"buffer_load_dwordx4 v7, s[{SX}:{SX + 3}], s33 offen lds")
        for p in range(3):
            for i2 in range(2):
                a(f"s_add_u32 s33, s38, {i2 * 8 * 3072 + p * 1024}")
                a(f"s_add_u32 m0, s32, {b * 24576 + p * 8192 + i2 * 1024}")
                a("s_nop 0")
                a(f"buffer_load_dwordx4 v8, s[{SW}:{SW + 3}], s33 offen lds")

    dma(0)
    dma(1)
    issued = 2
    for c in range(8):
        a(f"s_waitcnt vmcnt({8 * (issued - c - 1)})")
        a("s_barrier")
        while issued < min(c + 4, 8):
            dma(issued)
            issued += 1
    a.label("K1_END")
    a("s_endpgm")
    return name, 96, 40


def gen_k2(a):
    name = "attn_kernel"
    kernel_head(a, name)
    SWS = 12
    MK = 16
    a("s_cmp_ge_u32 s2, 256")
    a("s_cbranch_scc1 K2_END")
    a.diag_begin()
    a("s_load_dwordx2 s[8:9], s[0:1], 40")
    a("s_load_dwordx2 s[10:11], s[0:1], 16")
    a("v_lshrrev_b32 v2, 6, v0")
    a("v_and_b32 v1, 63, v0")
    a("s_and_b32 s50, s2, 1")
    a("s_lshl_b32 s50, s50, 4")
    a("s_bfe_u32 s51, s2, 0x40003")
    a("s_add_u32 s50, s50, s51")
    a("v_readfirstlane_b32 s52, v2")
    a("s_bfe_u32 s51, s2, 0x20001")
    a("s_lshl_b32 s51, s51, 1")
    a("s_lshr_b32 s53, s2, 7")
    a("s_add_u32 s51, s51, s53")
    a("v_and_b32 v3, 31, v1")
    a("v_lshrrev_b32 v4, 5, v1")
    a("v_lshlrev_b32 v5, 5, v3")
    a("v_lshl_add_u32 v5, v4, 4, v5")
    a("v_lshlrev_b32 v2, 4, v1")
    a("s_lshl_b32 s53, s50, 16")
    a("s_lshl_b32 s56, s51, 3")
    a("s_add_u32 s51, s56, s52")
    a("s_lshl_b32 s54, s51, 10")
    a("s_add_u32 s54, s54, s53")
    a("s_lshl_b32 s57, s52, 1")
    a("s_add_u32 s58, s56, s57")
    a("s_sub_i32 s58, s58, 8")
    a("s_add_i32 s59, s58, 1")
    a("s_max_i32 s58, s58, 0")
    a("s_max_i32 s59, s59, 0")
    a("s_lshl_b32 s58, s58, 10")
    a("s_lshl_b32 s59, s59, 10")
    a("s_add_u32 s58, s58, s53")
    a("s_add_u32 s59, s59, s53")
    a("s_lshl_b32 s57, s57, 10")
    a("s_lshl_b32 s60, s52, 10")
    a("v_add_u32 v6, s60, v5")
    a("s_waitcnt lgkmcnt(0)")
    srd(a, SWS, 8, WS_BYTES)
    QF, MPK, AC, OA, BIAS, PK = 8, 12, 20, 36, 52, 68
    SBUF = [132, 148, 164]
    KF = 180
    PA, PBb, PC = 216, 224, 232
    for (sg, ws, lo) in ((58, WS_K, 0), (59, WS_K, 1024), (58, WS_V, 16384), (59, WS_V, 17408)):
        a(f"s_add_u32 s61, s{sg}, {ws}")
        a(f"s_add_u32 m0, s57, {lo}")
        a("s_nop 0")
        a(f"buffer_load_dwordx4 v2, s[{SWS}:{SWS + 3}], s61 offen lds")
    a(f"buffer_load_dwordx4 {vr(QF, 4)}, v5, s[{SWS}:{SWS + 3}], s54 offen")
    srd(a, 64, 10, 512 * 512 * 2)
    a("s_lshr_b32 s68, s2, 3")
    a("s_lshl_b32 s68, s68, 4")
    a("s_lshl_b32 s69, s52, 1")
    a("s_add_u32 s68, s68, s69")
    a("s_lshl_b32 s68, s68, 10")
    a("s_and_b32 s69, s2, 1")
    a("s_lshl_b32 s69, s69, 9")
    a("s_add_u32 s68, s68, s69")
    a("v_lshlrev_b32 v7, 4, v3")
    a("v_lshl_add_u32 v7, v4, 10, v7")
    a("buffer_load_dwordx4 v[252:255], v7, s[64:67], s68 offen")
    a("v_lshrrev_b32 v7, 3, v3")
    a("v_lshlrev_b32 v7, 1, v7")
    a("v_bfe_u32 v2, v3, 1, 1")
    a("v_add_u32 v7, v7, v2")
    a("v_bfe_u32 v2, v3, 2, 1")
    a("v_xor_b32 v2, v2, v4")
    a("v_lshl_add_u32 v7, v2, 6, v7")
    a("v_and_b32 v2, 1, v3")
    a("v_lshlrev_b32 v2, 4, v2")
    a(f"v_mov_b32 v{BIAS}, 0x3eb9")
    a(f"v_mov_b32 v{BIAS + 1}, 0xba2c")
    a(f"v_lshlrev_b32 v{BIAS}, v2, v{BIAS}")
    a(f"v_lshlrev_b32 v{BIAS + 1}, v2, v{BIAS + 1}")
    for t in range(8):
        a(f"v_cmp_eq_u32 s[{MK + 2 * t}:{MK + 2 * t + 1}], {t}, v7")
    a("s_nop 1")
    for t in range(8):
        a(f"v_cndmask_b32 v{AC + t}, 0, v{BIAS}, s[{MK + 2 * t}:{MK + 2 * t + 1}]")
        a(f"v_cndmask_b32 v{AC + 8 + t}, 0, v{BIAS + 1}, s[{MK + 2 * t}:{MK + 2 * t + 1}]")
    a("v_lshlrev_b32 v7, 2, v4")
    a("v_sub_u32 v7, v3, v7")
    for r in range(16):
        c = 8 * (r // 4) + (r % 4)
        a(f"v_cmp_le_i32 s[{MK + 2 * r}:{MK + 2 * r + 1}], {c}, v7")
    a("v_mov_b32 v3, 0xffff")
    a("v_mov_b32 v7, 0xffff0000")
    a("s_nop 1")
    for j in range(8):
        a(f"v_cndmask_b32 v{MPK + j}, 0, v3, s[{MK + 4 * j}:{MK + 4 * j + 1}]")
        a(f"v_cndmask_b32 v{PA + j}, 0, v7, s[{MK + 4 * j + 2}:{MK + 4 * j + 3}]")
    for j in range(8):
        a(f"v_or_b32 v{MPK + j}, v{MPK + j}, v{PA + j}")
    for r in range(16):
        a(f"v_mov_b32 v{OA + r}, 0")
    a("v_mov_b32 v3, 0xff800000")
    a("v_mov_b32 v7, 0xff800000")
    a("v_mov_b32 v4, 0x3f803f80")
    a.stamp()
    a("s_waitcnt vmcnt(1)")
    a("s_barrier")
    a.stamp()
    korder = [0, 8, 1, 2, 3, 4, 5, 6, 7]
    for i in korder:
        a(f"ds_read_b128 {vr(KF + 4 * i, 4)}, v6 offset:{i * 1024}")

    def sbuf(i):
        if i == 0:
            return SBUF[0]
        if i == 8:
            return SBUF[1]
        return [SBUF[2], SBUF[0], SBUF[1]][(i - 1) % 3]

    def smfma(n):
        i = korder[n]
        return [f"s_waitcnt lgkmcnt({8 - n})",
                f"v_mfma_f32_32x32x16_bf16 {vr(sbuf(i), 16)}, {vr(KF + 4 * i, 4)}, {vr(QF, 4)}, 0"]

    vorder = [8, 0, 1, 2, 3, 4, 5, 6, 7]

    def vread(ns):
        o = ["s_mov_b32 exec_lo, 0xffff", "s_mov_b32 exec_hi, 0xffff"]
        for n in ns:
            i = vorder[n]
            b = KF + 8 * (n % 4)
            o += [f"ds_read_b128 {vr(b + 4 * u, 4)}, v6 offset:{16384 + i * 1024 + u * 512}" for u in range(2)]
        o.append("s_mov_b64 exec, -1")
        return o

    def emit_inter(valu, extra, start=1, step=None):
        n = len(extra)
        if step is None:
            step = max(1, (len(valu) - start) // max(n, 1))
        k = 0
        for idx, l in enumerate(valu):
            a(l)
            if k < n and idx >= start and (idx - start) % step == 0:
                for x in extra[k]:
                    a(x)
                k += 1
        while k < n:
            for x in extra[k]:
                a(x)
            k += 1

    def proc(src, slot):
        o = []
        for q in range(8):
            m = (3, 7)[q & 1]
            o.append(f"v_max3_f32 v{m}, v{m}, v{src + 2 * q}, v{src + 2 * q + 1}")
            o.append(f"v_cvt_pk_bf16_f32 v{PK + 8 * slot + q}, v{src + 2 * q}, v{src + 2 * q + 1}")
        return o

    for n in range(3):
        for l in smfma(n):
            a(l)
    a("s_nop 7")
    a("s_nop 1")
    a("s_cmp_ge_u32 s51, 8")
    a("s_cbranch_scc1 K2_HAVE0")
    for r in range(16):
        a(f"v_mov_b32 v{SBUF[0] + r}, 0xf14a0000")
    a.label("K2_HAVE0")
    for r in range(16):
        a(f"v_cndmask_b32 v{SBUF[1] + r}, v{SBUF[0] + r}, v{SBUF[1] + r}, s[{MK + 2 * r}:{MK + 2 * r + 1}]")
    for l in smfma(3):
        a(l)
    for l in proc(SBUF[1], 0):
        a(l)
    for i in range(1, 8):
        if i + 3 < 9:
            for l in smfma(i + 3):
                a(l)
        if i == 5:
            for r in range(16):
                a(f"v_mov_b32 v{KF + r}, v4")
            for l in vread([0, 1]):
                a(l)
        if i == 6:
            for r in range(16):
                a(f"v_mov_b32 v{KF + 16 + r}, v4")
            for l in vread([2, 3]):
                a(l)
        a(f"s_cmp_ge_u32 s51, {8 - i}")
        a(f"s_cbranch_scc1 K2_T{i}_OK")
        for q in range(8):
            a(f"v_mov_b32 v{PK + 8 * i + q}, 0xf14af14a")
        a("s_nop 3")
        a(f"s_branch K2_T{i}_DONE")
        a.label(f"K2_T{i}_OK")
        for l in proc(sbuf(i), i):
            a(l)
        a.label(f"K2_T{i}_DONE")
    a.stamp()
    a("v_max_f32 v3, v3, v7")
    a("v_mov_b32 v7, v3")
    a("s_nop 1")
    a("v_permlane32_swap_b32 v3, v7")
    a("s_nop 1")
    a("v_max_f32 v3, v3, v7")
    a("v_cvt_pk_bf16_f32 v3, 0, v3")
    a("v_mul_f32 v3, 0xbeb8aa00, v3")
    for r in range(16):
        a(f"v_mov_b32 v{BIAS + r}, v3")
    DB = [SBUF[0], SBUF[1]]

    def scale(i):
        d = DB[i % 2]
        p = PK + 8 * i
        return [[f"v_mfma_f32_32x32x16_bf16 {vr(d, 16)}, {vr(AC, 4)}, {vr(p, 4)}, {vr(BIAS, 16)}"],
                [f"v_mfma_f32_32x32x16_bf16 {vr(d, 16)}, {vr(AC + 4, 4)}, {vr(p + 4, 4)}, {vr(d, 16)}"],
                [f"v_mfma_f32_32x32x16_bf16 {vr(d, 16)}, {vr(AC + 8, 4)}, {vr(p, 4)}, {vr(d, 16)}"],
                [f"v_mfma_f32_32x32x16_bf16 {vr(d, 16)}, {vr(AC + 12, 4)}, {vr(p + 4, 4)}, {vr(d, 16)}"]]

    def expo(i, pdst):
        d = DB[i % 2]
        o = [f"v_exp_f32 v{d + r}, v{d + r}" for r in range(16)]
        o.append("s_nop 0")
        o += [f"v_cvt_pk_bf16_f32 v{pdst + q}, v{d + 2 * q}, v{d + 2 * q + 1}" for q in range(8)]
        return o

    def pv(n, psrc):
        b = KF + 8 * (n % 4)
        return [[f"v_mfma_f32_32x32x16_bf16 {vr(OA, 16)}, {vr(b + 4 * u, 4)}, {vr(psrc + 4 * u, 4)}, {vr(OA, 16)}"] for u in range(2)]

    a("s_nop 1")
    for g in scale(0):
        a(g[0])
    a("s_nop 7")
    a("s_nop 3")
    pend = []
    for i in range(8):
        pdst = PA if i % 2 == 0 else PBb
        if i == 0:
            pdst = PA
        elif i == 1:
            pdst = PA
        else:
            pdst = PBb if i % 2 == 0 else PA
        val = expo(i, pdst)
        if i == 0:
            for q in range(8):
                val.append(f"v_and_b32 v{PBb + q}, v{PA + q}, v{MPK + q}")
                val.append(f"v_bfi_b32 v{PC + q}, v{MPK + q}, 0, v{PA + q}")
        extra = (scale(i + 1) if i + 1 < 8 else []) + pend
        emit_inter(val, extra, start=1, step=2 if len(extra) > 6 else 3)
        if i == 0:
            p0, p1 = pv(0, PBb), pv(1, PC)
            pend = [["s_waitcnt lgkmcnt(4)"] + p0[0], p0[1], p1[0], p1[1] + vread([4, 5])]
        else:
            n = i + 1
            issued = min(n + 3, 8)
            p0 = pv(n, pdst)
            pend = [[f"s_waitcnt lgkmcnt({2 * (issued - n)})"] + p0[0], p0[1] + (vread([n + 4]) if n + 4 <= 8 else [])]
    a("s_nop 1")
    for g in pend:
        for l in g:
            a(l)
    a("s_nop 7")
    a("s_nop 7")
    a(f"v_rcp_f32 v7, v{OA + 8}")
    a("s_nop 0")
    for r in range(8):
        a(f"v_mul_f32 v{OA + r}, v{OA + r}, v7")
    T = SBUF[2]
    for q in range(4):
        a(f"v_cvt_pk_bf16_f32 v{T + q}, v{OA + 2 * q}, v{OA + 2 * q + 1}")
    a("s_lshl_b32 s55, s51, 5")
    a("s_add_u32 s55, s55, s50")
    a("s_lshl_b32 s55, s55, 10")
    a(f"s_add_u32 s55, s55, {WS_O}")
    a(f"buffer_store_dwordx4 {vr(T, 4)}, v5, s[{SWS}:{SWS + 3}], s55 offen")
    a("s_sub_u32 s63, s52, 7")
    a.diag_end(1, 52 if DIAG != 2 else 63, "K2_END")
    a.label("K2_END")
    a("s_endpgm")
    return name, 256, 80


def gen_k3(a):
    name = "oproj_kernel"
    kernel_head(a, name)
    SW, SWS, SO = 12, 16, 20
    a("s_cmp_ge_u32 s2, 256")
    a("s_cbranch_scc1 K3_END")
    a.diag_begin()
    a("s_load_dwordx4 s[4:7], s[0:1], 16")
    a("s_load_dwordx2 s[8:9], s[0:1], 40")
    a("v_lshrrev_b32 v2, 6, v0")
    a("v_and_b32 v1, 63, v0")
    a("s_and_b32 s25, s2, 1")
    a("s_lshl_b32 s25, s25, 2")
    a("s_bfe_u32 s24, s2, 0x20003")
    a("s_add_u32 s25, s25, s24")
    a("v_readfirstlane_b32 s26, v2")
    a("s_bfe_u32 s24, s2, 0x20001")
    a("s_lshl_b32 s24, s24, 3")
    a("s_lshr_b32 s27, s2, 5")
    a("s_add_u32 s24, s24, s27")
    a("s_cmp_ge_u32 s26, 4")
    a("s_cbranch_scc1 K3_LOADER")
    a("v_and_b32 v3, 31, v1")
    a("v_lshrrev_b32 v4, 5, v1")
    a("s_and_b32 s27, s26, 1")
    a("s_lshr_b32 s28, s26, 1")
    a("v_lshlrev_b32 v11, 5, v3")
    a("v_lshl_add_u32 v11, v4, 4, v11")
    a("s_lshl_b32 s29, s27, 15")
    a("v_add_u32 v11, s29, v11")
    a("v_lshrrev_b32 v8, 2, v1")
    a("v_and_b32 v8, 3, v8")
    a("v_lshrrev_b32 v9, 1, v8")
    a("v_xor_b32 v9, s28, v9")
    a("v_lshlrev_b32 v9, 6, v9")
    a("v_lshl_add_u32 v8, v4, 2, v8")
    a("v_lshl_add_u32 v8, v8, 7, v9")
    a("v_lshrrev_b32 v9, 4, v1")
    a("v_and_b32 v9, 1, v9")
    a("v_lshl_add_u32 v8, v9, 5, v8")
    a("v_and_b32 v9, 1, v1")
    a("v_lshl_add_u32 v8, v9, 4, v8")
    a("v_lshrrev_b32 v9, 1, v1")
    a("v_and_b32 v9, 1, v9")
    a("v_lshl_add_u32 v8, v9, 3, v8")
    a("v_add_u32 v8, 0x10000, v8")
    a("v_lshlrev_b32 v10, 10, v3")
    a("v_lshl_add_u32 v10, v4, 4, v10")
    a("s_lshl_b32 s31, s24, 16")
    a("s_lshl_b32 s32, s27, 15")
    a("s_add_u32 s31, s31, s32")
    a("s_lshl_b32 s32, s25, 7")
    a("s_add_u32 s31, s31, s32")
    a("s_lshl_b32 s32, s28, 6")
    a("s_add_u32 s31, s31, s32")
    ACC = 16
    FR = 32
    for r in range(16):
        a(f"v_mov_b32 v{ACC + r}, 0")
    a("s_waitcnt lgkmcnt(0)")
    srd(a, SO, 6, 2048 * 512 * 2)

    def reads(s):
        f = FR + (s % 4) * 8
        a(f"ds_read_b128 {vr(f, 4)}, v11 offset:{s * 1024}")
        a(f"ds_read_b64_tr_b16 {vr(f + 4, 2)}, v8 offset:{s * 2048}")
        a(f"ds_read_b64_tr_b16 {vr(f + 6, 2)}, v8 offset:{s * 2048 + 1024}")

    NPH = 8
    SP = 32 // NPH
    for j in range(NPH):
        a("s_barrier")
        if j in (0, NPH - 1):
            a.stamp()
        pre = min(3, SP)
        for s in range(SP * j, SP * j + pre):
            reads(s)
        for s in range(SP * j, SP * j + SP):
            if s + 3 < SP * j + SP:
                reads(s + 3)
                a("s_waitcnt lgkmcnt(9)")
            else:
                a(f"s_waitcnt lgkmcnt({3 * (SP * j + SP - 1 - s)})")
            f = FR + (s % 4) * 8
            a(f"v_mfma_f32_32x32x16_bf16 {vr(ACC, 16)}, {vr(f + 4, 4)}, {vr(f, 4)}, {vr(ACC, 16)}")
    a("s_nop 7")
    a("s_nop 7")
    T = 32
    for u in range(2):
        for q in range(4):
            a(f"v_cvt_pk_bf16_f32 v{T + 4 * u + q}, v{ACC + 8 * u + 2 * q}, v{ACC + 8 * u + 2 * q + 1}")
        a(f"buffer_store_dwordx4 {vr(T + 4 * u, 4)}, v10, s[{SO}:{SO + 3}], s31 offen offset:{u * 32}")
    a.diag_end(2, 26, "K3_END")
    a("s_endpgm")
    a.label("K3_LOADER")
    a("s_sub_u32 s26, s26, 4")
    a("v_lshlrev_b32 v5, 4, v1")
    a("v_lshrrev_b32 v6, 4, v1")
    a("v_and_b32 v6, 1, v6")
    a("v_lshlrev_b32 v6, 2, v6")
    a("v_and_b32 v7, 7, v1")
    a("v_xor_b32 v6, v6, v7")
    a("v_lshlrev_b32 v6, 4, v6")
    a("v_lshrrev_b32 v7, 3, v1")
    a("v_lshl_add_u32 v6, v7, 10, v6")
    a("s_and_b32 s27, s26, 1")
    a("s_lshr_b32 s28, s26, 1")
    a("s_lshl_b32 s33, s24, 16")
    a("s_lshl_b32 s34, s27, 15")
    a("s_add_u32 s33, s33, s34")
    a("s_lshl_b32 s35, s28, 11")
    a("s_add_u32 s33, s33, s35")
    a(f"s_add_u32 s33, s33, {WS_O}")
    a("s_add_u32 s34, s34, s35")
    a("s_lshl_b32 s35, s26, 14")
    a("s_lshl_b32 s36, s25, 7")
    a("s_add_u32 s35, s35, s36")
    a("s_lshl_b32 s36, s26, 11")
    a("s_add_u32 s36, s36, 0x10000")
    a("s_waitcnt lgkmcnt(0)")
    srd(a, SW, 4, 512 * 512 * 2)
    srd(a, SWS, 8, WS_BYTES)
    a("s_lshr_b32 s39, s2, 3")

    def dma3(j):
        a(f"s_add_u32 s40, s39, {j}")
        a("s_and_b32 s40, s40, 7")
        a("s_lshl_b32 s41, s40, 12")
        a("s_add_u32 s41, s41, s33")
        a("s_lshl_b32 s42, s40, 16")
        a("s_add_u32 s42, s42, s35")
        for i in range(2):
            a(f"s_add_u32 s37, s41, {i * 1024}")
            a(f"s_add_u32 m0, s34, {j * 4096 + i * 1024}")
            a("s_nop 0")
            a(f"buffer_load_dwordx4 v5, s[{SWS}:{SWS + 3}], s37 offen lds")
        for i in range(2):
            a(f"s_add_u32 s37, s42, {i * 8192}")
            a(f"s_add_u32 m0, s36, {j * 8192 + i * 1024}")
            a("s_nop 0")
            a(f"buffer_load_dwordx4 v6, s[{SW}:{SW + 3}], s37 offen lds")

    LA3 = 4
    for j in range(LA3):
        dma3(j)
    for j in range(NPH):
        issued = min(j + LA3, NPH)
        a(f"s_waitcnt vmcnt({4 * (issued - j - 1)})")
        a("s_barrier")
        if j + LA3 < NPH:
            dma3(j + LA3)
    a.label("K3_END")
    a("s_endpgm")
    return name, 64, 48


def main():
    a = Asm()
    hdr = open("standalone__sliding_block__prompt.s.ref").read().split("\n")
    for line in hdr:
        if line.startswith("; @launch") or not line.startswith(";"):
            break
        a.raw(line)
    a.raw("; @launch kernel=qkv_kernel grid=(256,1,1) block=(512,1,1) lds=131072")
    a.raw("; @launch kernel=attn_kernel grid=(256,1,1) block=(512,1,1) lds=33280")
    a.raw("; @launch kernel=oproj_kernel grid=(256,1,1) block=(512,1,1) lds=131072")
    a.raw('.amdgcn_target "amdgcn-amd-amdhsa--gfx950"')
    a.raw(".text")
    ks = [gen_k1(a), gen_k2(a), gen_k3(a)]
    a.raw('.section .rodata,"a"')
    for name, v, s in ks:
        kd(a, name, v, s)
    open(OUT, "w").write(a.text())


main()
```

```python
import sys

OUT = sys.argv[1] if len(sys.argv) > 1 else "standalone__sliding_block__prompt.s"

MB = 1 << 20
WS_Q, WS_K, WS_V, WS_O = 0, 65536, 131072, 6 * MB
HS = 196608
WS_BYTES = 8 * MB


import os
DIAG = int(os.environ.get("DIAG", "0"))
STF = os.environ.get("STF", "sc1")
STF3 = os.environ.get("STF3", "sc1")


class Asm:
    def __init__(self):
        self.lines = []
        self.nst = 0

    def stamp(self):
        if DIAG:
            i = self.nst
            self.nst += 1
            self(f"s_memtime s[{82 + 2 * i}:{83 + 2 * i}]")

    def diag_begin(self):
        if DIAG:
            self.nst = 0
            self("s_memrealtime s[100:101]")
            self.stamp()

    def diag_end(self, kidx, wave_sreg, lab):
        if not DIAG:
            return
        self.stamp()
        self("s_waitcnt vmcnt(0) lgkmcnt(0)")
        self.stamp()
        self("s_memrealtime s[98:99]")
        self("s_load_dwordx2 s[76:77], s[0:1], 40")
        self("s_waitcnt lgkmcnt(0)")
        self(f"s_cmp_lg_u32 s{wave_sreg}, 0")
        self(f"s_cbranch_scc1 {lab}")
        self("s_and_b32 s77, s77, 0xffff")
        self("s_mov_b32 s78, 0x2000000")
        self("s_mov_b32 s79, 0x00020000")
        self("s_lshl_b32 s80, s2, 7")
        self(f"s_add_u32 s80, s80, {16 * MB + kidx * 65536}")
        self("v_mov_b32 v1, 0")
        self("v_mov_b32 v2, s100")
        self("buffer_store_dword v2, v1, s[76:79], s80 offen")
        self("v_mov_b32 v2, s98")
        self("buffer_store_dword v2, v1, s[76:79], s80 offen offset:4")
        for i in range(self.nst):
            self(f"s_sub_u32 s81, s{82 + 2 * i}, s82")
            self("v_mov_b32 v2, s81")
            self(f"buffer_store_dword v2, v1, s[76:79], s80 offen offset:{8 + 4 * i}")

    def __call__(self, s):
        self.lines.append("    " + s)

    def label(self, l):
        self.lines.append(l + ":")

    def raw(self, s):
        self.lines.append(s)

    def text(self):
        return "\n".join(self.lines) + "\n"


def vr(base, n):
    return f"v[{base}:{base + n - 1}]"


def srd(a, d, ptr_lo, nbytes):
    a(f"s_mov_b32 s{d}, s{ptr_lo}")
    a(f"s_and_b32 s{d + 1}, s{ptr_lo + 1}, 0xffff")
    a(f"s_mov_b32 s{d + 2}, {nbytes:#x}")
    a(f"s_mov_b32 s{d + 3}, 0x00020000")


def kernel_head(a, name):
    a.raw(f".globl {name}")
    a.raw(".p2align 8")
    a.raw(f".type {name},@function")
    a.label(name)


def kd(a, name, vgpr, sgpr):
    acc = (vgpr + 3) // 4 * 4
    a.raw(".p2align 6")
    a.raw(f".amdhsa_kernel {name}")
    a.raw(f"  .amdhsa_next_free_vgpr {vgpr}")
    a.raw(f"  .amdhsa_next_free_sgpr {102 if DIAG else sgpr}")
    a.raw(f"  .amdhsa_accum_offset {acc}")
    a.raw("  .amdhsa_group_segment_fixed_size 0")
    a.raw("  .amdhsa_kernarg_size 48")
    a.raw("  .amdhsa_user_sgpr_count 2")
    a.raw("  .amdhsa_user_sgpr_kernarg_segment_ptr 1")
    a.raw("  .amdhsa_system_sgpr_workgroup_id_x 1")
    a.raw(".end_amdhsa_kernel")


def gen_k1(a):
    name = "qkv_kernel"
    kernel_head(a, name)
    SX, SW, SWS = 12, 16, 20
    a("s_cmp_ge_u32 s2, 256")
    a("s_cbranch_scc1 K1_END")
    a.diag_begin()
    a("s_load_dwordx4 s[4:7], s[0:1], 0")
    a("s_load_dwordx2 s[8:9], s[0:1], 40")
    a("v_lshrrev_b32 v2, 6, v0")
    a("v_and_b32 v1, 63, v0")
    a("s_and_b32 s24, s2, 7")
    a("s_lshr_b32 s25, s2, 3")
    a("v_readfirstlane_b32 s26, v2")
    a("s_nop 0")
    a("s_cmp_ge_u32 s26, 4")
    a("s_cbranch_scc1 K1_LOADER")
    a("v_and_b32 v3, 31, v1")
    a("v_lshrrev_b32 v4, 5, v1")
    a("s_and_b32 s27, s26, 1")
    a("s_lshr_b32 s28, s26, 1")
    a("s_lshl_b32 s29, s27, 5")
    a("v_add_u32 v9, s29, v3")
    a("v_lshrrev_b32 v10, 1, v9")
    a("v_and_b32 v10, 7, v10")
    a("v_lshlrev_b32 v9, 7, v9")
    for s in range(4):
        a(f"v_add_u32 v11, {2 * s}, v4")
        a("v_xor_b32 v11, v11, v10")
        a(f"v_lshl_add_u32 v{12 + s}, v11, 4, v9")
    a("v_lshrrev_b32 v9, 2, v1")
    a("v_and_b32 v9, 3, v9")
    a("v_lshrrev_b32 v10, 1, v9")
    a("v_xor_b32 v10, s28, v10")
    a("v_lshlrev_b32 v10, 6, v10")
    a("v_lshl_add_u32 v9, v4, 3, v9")
    a("v_lshl_add_u32 v10, v9, 7, v10")
    a("v_lshrrev_b32 v9, 4, v1")
    a("v_and_b32 v9, 1, v9")
    a("v_lshl_add_u32 v10, v9, 5, v10")
    a("v_and_b32 v9, 3, v1")
    a("v_lshl_add_u32 v10, v9, 3, v10")
    a("v_add_u32 v10, 0x8000, v10")
    a("v_add_u32 v11, 0xc000, v10")
    a("v_lshlrev_b32 v5, 5, v3")
    a("v_lshl_add_u32 v5, v4, 4, v5")
    a("v_and_b32 v6, 15, v1")
    a("v_lshlrev_b32 v6, 5, v6")
    a("v_lshl_add_u32 v6, v4, 4, v6")
    a("v_lshrrev_b32 v9, 4, v3")
    a(f"v_mul_u32_u24 v9, {HS}, v9")
    a("v_add_u32 v6, v9, v6")
    ACC = 16
    FR = 64
    for r in range(48):
        a(f"v_mov_b32 v{ACC + r}, 0")
    a(f"s_mul_i32 s31, s24, {4 * HS}")
    a(f"s_mul_i32 s32, s28, {2 * HS}")
    a("s_add_u32 s31, s31, s32")
    a("s_lshl_b32 s32, s25, 11")
    a("s_add_u32 s31, s31, s32")
    a("s_lshl_b32 s32, s27, 10")
    a("s_add_u32 s31, s31, s32")
    a(f"s_add_u32 s32, s31, {HS}")
    a(f"s_add_u32 s33, s31, {WS_K}")
    a(f"s_add_u32 s34, s33, {HS}")
    a(f"s_add_u32 s35, s31, {WS_V}")
    a("s_waitcnt lgkmcnt(0)")
    srd(a, SWS, 8, WS_BYTES)

    def reads(c, s):
        b = c % 4
        f = FR + ((4 * c + s) % 2) * 16
        a(f"ds_read_b128 {vr(f, 4)}, v{12 + s} offset:{b * 8192}")
        breg = 10 if b < 2 else 11
        boff = (b % 2) * 24576 + s * 2048
        for p in range(3):
            a(f"ds_read_b64_tr_b16 {vr(f + 4 + 4 * p, 2)}, v{breg} offset:{boff + p * 8192}")
            a(f"ds_read_b64_tr_b16 {vr(f + 6 + 4 * p, 2)}, v{breg} offset:{boff + p * 8192 + 512}")

    for c in range(8):
        a("s_barrier")
        if c in (0, 1, 4, 7):
            a.stamp()
        reads(c, 0)
        for s in range(4):
            if s + 1 < 4:
                reads(c, s + 1)
                a("s_waitcnt lgkmcnt(7)")
            else:
                a("s_waitcnt lgkmcnt(0)")
            f = FR + ((4 * c + s) % 2) * 16
            af = vr(f, 4)
            a(f"v_mfma_f32_32x32x16_bf16 {vr(ACC, 16)}, {vr(f + 4, 4)}, {af}, {vr(ACC, 16)}")
            a(f"v_mfma_f32_32x32x16_bf16 {vr(ACC + 16, 16)}, {vr(f + 8, 4)}, {af}, {vr(ACC + 16, 16)}")
            a(f"v_mfma_f32_32x32x16_bf16 {vr(ACC + 32, 16)}, {af}, {vr(f + 12, 4)}, {vr(ACC + 32, 16)}")
    a("s_nop 7")
    a("s_nop 3")
    T = 64
    for tile, soffs in ((0, (31, 32)), (1, (33, 34))):
        for hd in range(2):
            base = ACC + 16 * tile + 8 * hd
            t = T + 4 * (2 * tile + hd)
            for q in range(4):
                a(f"v_cvt_pk_bf16_f32 v{t + q}, v{base + 2 * q}, v{base + 2 * q + 1}")
            a(f"buffer_store_dwordx4 {vr(t, 4)}, v5, s[{SWS}:{SWS + 3}], s{soffs[hd]} offen {STF}")
    for u in range(2):
        base = ACC + 32 + 8 * u
        t = T + 16 + 4 * u
        for q in range(4):
            a(f"v_cvt_pk_bf16_f32 v{t + q}, v{base + 2 * q}, v{base + 2 * q + 1}")
        a(f"buffer_store_dwordx4 {vr(t, 4)}, v6, s[{SWS}:{SWS + 3}], s35 offen offset:{u * 512} {STF}")
    a.diag_end(0, 26, "K1_END")
    a("s_endpgm")
    a.label("K1_LOADER")
    a("s_sub_u32 s26, s26, 4")
    a("v_lshrrev_b32 v5, 3, v1")
    a("v_and_b32 v6, 7, v1")
    a("s_and_b32 s27, s26, 1")
    a("v_lshrrev_b32 v7, 4, v1")
    a("s_lshl_b32 s29, s27, 2")
    a("v_add_u32 v7, s29, v7")
    a("v_xor_b32 v7, v7, v6")
    a("v_lshlrev_b32 v7, 4, v7")
    a("v_lshl_add_u32 v7, v5, 10, v7")
    a("v_lshrrev_b32 v8, 4, v1")
    a("v_and_b32 v8, 1, v8")
    a("v_lshlrev_b32 v8, 2, v8")
    a("v_xor_b32 v8, v8, v6")
    a("v_lshlrev_b32 v8, 4, v8")
    a("v_mul_u32_u24 v9, 3072, v5")
    a("v_add_u32 v8, v8, v9")
    a("s_lshl_b32 s29, s25, 16")
    a("s_lshl_b32 s30, s26, 13")
    a("s_add_u32 s29, s29, s30")
    a("s_lshl_b32 s30, s26, 10")
    a("s_mul_i32 s31, s26, 49152")
    a("s_lshl_b32 s32, s24, 7")
    a("s_add_u32 s31, s31, s32")
    a("s_lshl_b32 s32, s26, 11")
    a("s_add_u32 s32, s32, 0x8000")
    a("s_waitcnt lgkmcnt(0)")
    srd(a, SX, 4, 2048 * 512 * 2)
    srd(a, SW, 6, 512 * 1536 * 2)

    a("s_lshr_b32 s39, s2, 3")

    def dma(c):
        b = c % 4
        a(f"s_add_u32 s36, s39, {c}")
        a("s_and_b32 s36, s36, 7")
        a("s_lshl_b32 s37, s36, 7")
        a("s_add_u32 s37, s37, s29")
        a("s_mul_i32 s38, s36, 196608")
        a("s_add_u32 s38, s38, s31")
        for i2 in range(2):
            a(f"s_add_u32 s33, s37, {i2 * 32768}")
            a(f"s_add_u32 m0, s30, {b * 8192 + i2 * 4096}")
            a("s_nop 0")
            a(f"buffer_load_dwordx4 v7, s[{SX}:{SX + 3}], s33 offen lds")
        for p in range(3):
            for i2 in range(2):
                a(f"s_add_u32 s33, s38, {i2 * 8 * 3072 + p * 1024}")
                a(f"s_add_u32 m0, s32, {b * 24576 + p * 8192 + i2 * 1024}")
                a("s_nop 0")
                a(f"buffer_load_dwordx4 v8, s[{SW}:{SW + 3}], s33 offen lds")

    dma(0)
    dma(1)
    issued = 2
    for c in range(8):
        a(f"s_waitcnt vmcnt({8 * (issued - c - 1)})")
        a("s_barrier")
        while issued < min(c + 4, 8):
            dma(issued)
            issued += 1
    a.label("K1_END")
    a("s_endpgm")
    return name, 96, 40


def gen_k2(a):
    name = "attn_kernel"
    kernel_head(a, name)
    SWS = 12
    MK = 16
    a("s_cmp_ge_u32 s2, 256")
    a("s_cbranch_scc1 K2_END")
    a.diag_begin()
    a("s_load_dwordx2 s[8:9], s[0:1], 40")
    a("s_load_dwordx2 s[10:11], s[0:1], 16")
    a("v_lshrrev_b32 v2, 6, v0")
    a("v_and_b32 v1, 63, v0")
    a("s_and_b32 s50, s2, 7")
    a("s_lshl_b32 s50, s50, 2")
    a("s_bfe_u32 s51, s2, 0x20003")
    a("s_add_u32 s50, s50, s51")
    a("v_readfirstlane_b32 s52, v2")
    a("s_lshr_b32 s51, s2, 5")
    a("v_and_b32 v3, 31, v1")
    a("v_lshrrev_b32 v4, 5, v1")
    a("v_lshlrev_b32 v5, 5, v3")
    a("v_lshl_add_u32 v5, v4, 4, v5")
    a("v_lshlrev_b32 v2, 4, v1")
    a(f"s_mul_i32 s53, s50, {HS}")
    a("s_lshl_b32 s56, s51, 3")
    a("s_add_u32 s51, s56, s52")
    a("s_lshl_b32 s54, s51, 10")
    a("s_add_u32 s54, s54, s53")
    a("s_lshl_b32 s57, s52, 1")
    a("s_add_u32 s58, s56, s57")
    a("s_sub_i32 s58, s58, 8")
    a("s_add_i32 s59, s58, 1")
    a("s_max_i32 s58, s58, 0")
    a("s_max_i32 s59, s59, 0")
    a("s_lshl_b32 s58, s58, 10")
    a("s_lshl_b32 s59, s59, 10")
    a("s_add_u32 s58, s58, s53")
    a("s_add_u32 s59, s59, s53")
    a("s_lshl_b32 s57, s57, 10")
    a("s_lshl_b32 s60, s52, 10")
    a("v_add_u32 v6, s60, v5")
    a("s_waitcnt lgkmcnt(0)")
    srd(a, SWS, 8, WS_BYTES)
    QF, MPK, AC, OA, BIAS, PK = 8, 12, 20, 36, 52, 68
    SBUF = [132, 148, 164]
    KF = 180
    PA, PBb, PC = 216, 224, 232
    for k, (sg, ws, lo) in enumerate(((58, WS_K, 0), (59, WS_K, 1024), (58, WS_V, 16384), (59, WS_V, 17408))):
        a(f"s_add_u32 s61, s{sg}, {ws}")
        a(f"s_add_u32 m0, s57, {lo}")
        a("s_nop 0")
        a(f"buffer_load_dwordx4 v2, s[{SWS}:{SWS + 3}], s61 offen lds")
        if k == 1:
            a(f"buffer_load_dwordx4 {vr(QF, 4)}, v5, s[{SWS}:{SWS + 3}], s54 offen")
    srd(a, 64, 10, 512 * 512 * 2)
    a("s_lshr_b32 s68, s2, 3")
    a("s_lshl_b32 s68, s68, 4")
    a("s_lshl_b32 s69, s52, 1")
    a("s_add_u32 s68, s68, s69")
    a("s_lshl_b32 s68, s68, 10")
    a("s_and_b32 s69, s2, 1")
    a("s_lshl_b32 s69, s69, 9")
    a("s_add_u32 s68, s68, s69")
    a("v_lshlrev_b32 v7, 4, v3")
    a("v_lshl_add_u32 v7, v4, 10, v7")
    a("buffer_load_dwordx4 v[252:255], v7, s[64:67], s68 offen")
    a("v_lshrrev_b32 v7, 3, v3")
    a("v_lshlrev_b32 v7, 1, v7")
    a("v_bfe_u32 v2, v3, 1, 1")
    a("v_add_u32 v7, v7, v2")
    a("v_bfe_u32 v2, v3, 2, 1")
    a("v_xor_b32 v2, v2, v4")
    a("v_lshl_add_u32 v7, v2, 6, v7")
    a("v_and_b32 v2, 1, v3")
    a("v_lshlrev_b32 v2, 4, v2")
    a(f"v_mov_b32 v{BIAS}, 0x3eb9")
    a(f"v_mov_b32 v{BIAS + 1}, 0xba2c")
    a(f"v_lshlrev_b32 v{BIAS}, v2, v{BIAS}")
    a(f"v_lshlrev_b32 v{BIAS + 1}, v2, v{BIAS + 1}")
    for t in range(8):
        a(f"v_cmp_eq_u32 s[{MK + 2 * t}:{MK + 2 * t + 1}], {t}, v7")
    a("s_nop 1")
    for t in range(8):
        a(f"v_cndmask_b32 v{AC + t}, 0, v{BIAS}, s[{MK + 2 * t}:{MK + 2 * t + 1}]")
        a(f"v_cndmask_b32 v{AC + 8 + t}, 0, v{BIAS + 1}, s[{MK + 2 * t}:{MK + 2 * t + 1}]")
    a("v_lshlrev_b32 v7, 2, v4")
    a("v_sub_u32 v7, v3, v7")
    for r in range(16):
        c = 8 * (r // 4) + (r % 4)
        a(f"v_cmp_le_i32 s[{MK + 2 * r}:{MK + 2 * r + 1}], {c}, v7")
    a("v_mov_b32 v3, 0xffff")
    a("v_mov_b32 v7, 0xffff0000")
    a("s_nop 1")
    for j in range(8):
        a(f"v_cndmask_b32 v{MPK + j}, 0, v3, s[{MK + 4 * j}:{MK + 4 * j + 1}]")
        a(f"v_cndmask_b32 v{PA + j}, 0, v7, s[{MK + 4 * j + 2}:{MK + 4 * j + 3}]")
    for j in range(8):
        a(f"v_or_b32 v{MPK + j}, v{MPK + j}, v{PA + j}")
    for r in range(16):
        a(f"v_mov_b32 v{OA + r}, 0")
    a("v_mov_b32 v3, 0xff800000")
    a("v_mov_b32 v7, 0xff800000")
    a("v_mov_b32 v4, 0x3f803f80")
    a.stamp()
    a("s_waitcnt vmcnt(3)")
    a("s_barrier")
    a.stamp()
    korder = [0, 8, 1, 2, 3, 4, 5, 6, 7]
    for i in korder:
        a(f"ds_read_b128 {vr(KF + 4 * i, 4)}, v6 offset:{i * 1024}")

    def sbuf(i):
        if i == 0:
            return SBUF[0]
        if i == 8:
            return SBUF[1]
        return [SBUF[2], SBUF[0], SBUF[1]][(i - 1) % 3]

    def smfma(n):
        i = korder[n]
        return [f"s_waitcnt lgkmcnt({8 - n})",
                f"v_mfma_f32_32x32x16_bf16 {vr(sbuf(i), 16)}, {vr(KF + 4 * i, 4)}, {vr(QF, 4)}, 0"]

    vorder = [8, 0, 1, 2, 3, 4, 5, 6, 7]

    def vread(ns):
        o = ["s_mov_b32 exec_lo, 0xffff", "s_mov_b32 exec_hi, 0xffff"]
        for n in ns:
            i = vorder[n]
            b = KF + 8 * (n % 4)
            o += [f"ds_read_b128 {vr(b + 4 * u, 4)}, v6 offset:{16384 + i * 1024 + u * 512}" for u in range(2)]
        o.append("s_mov_b64 exec, -1")
        return o

    def emit_inter(valu, extra, start=1, step=None):
        n = len(extra)
        if step is None:
            step = max(1, (len(valu) - start) // max(n, 1))
        k = 0
        for idx, l in enumerate(valu):
            a(l)
            if k < n and idx >= start and (idx - start) % step == 0:
                for x in extra[k]:
                    a(x)
                k += 1
        while k < n:
            for x in extra[k]:
                a(x)
            k += 1

    def proc(src, slot):
        o = []
        for q in range(8):
            m = (3, 7)[q & 1]
            o.append(f"v_max3_f32 v{m}, v{m}, v{src + 2 * q}, v{src + 2 * q + 1}")
            o.append(f"v_cvt_pk_bf16_f32 v{PK + 8 * slot + q}, v{src + 2 * q}, v{src + 2 * q + 1}")
        return o

    for n in range(3):
        for l in smfma(n):
            a(l)
    a("s_nop 7")
    a("s_nop 1")
    a("s_cmp_ge_u32 s51, 8")
    a("s_cbranch_scc1 K2_HAVE0")
    for r in range(16):
        a(f"v_mov_b32 v{SBUF[0] + r}, 0xf14a0000")
    a.label("K2_HAVE0")
    for r in range(16):
        a(f"v_cndmask_b32 v{SBUF[1] + r}, v{SBUF[0] + r}, v{SBUF[1] + r}, s[{MK + 2 * r}:{MK + 2 * r + 1}]")
    for l in smfma(3):
        a(l)
    for l in proc(SBUF[1], 0):
        a(l)
    for i in range(1, 8):
        if i + 3 < 9:
            for l in smfma(i + 3):
                a(l)
        if i == 5:
            for r in range(16):
                a(f"v_mov_b32 v{KF + r}, v4")
            a("s_waitcnt vmcnt(1)")
            a("s_barrier")
            for l in vread([0, 1]):
                a(l)
        if i == 6:
            for r in range(16):
                a(f"v_mov_b32 v{KF + 16 + r}, v4")
            for l in vread([2, 3]):
                a(l)
        a(f"s_cmp_ge_u32 s51, {8 - i}")
        a(f"s_cbranch_scc1 K2_T{i}_OK")
        for q in range(8):
            a(f"v_mov_b32 v{PK + 8 * i + q}, 0xf14af14a")
        a("s_nop 3")
        a(f"s_branch K2_T{i}_DONE")
        a.label(f"K2_T{i}_OK")
        for l in proc(sbuf(i), i):
            a(l)
        a.label(f"K2_T{i}_DONE")
    a.stamp()
    a("v_max_f32 v3, v3, v7")
    a("v_mov_b32 v7, v3")
    a("s_nop 1")
    a("v_permlane32_swap_b32 v3, v7")
    a("s_nop 1")
    a("v_max_f32 v3, v3, v7")
    a("v_cvt_pk_bf16_f32 v3, 0, v3")
    a("v_mul_f32 v3, 0xbeb8aa00, v3")
    for r in range(16):
        a(f"v_mov_b32 v{BIAS + r}, v3")
    DB = [SBUF[0], SBUF[1]]

    def scale(i):
        d = DB[i % 2]
        p = PK + 8 * i
        return [[f"v_mfma_f32_32x32x16_bf16 {vr(d, 16)}, {vr(AC, 4)}, {vr(p, 4)}, {vr(BIAS, 16)}"],
                [f"v_mfma_f32_32x32x16_bf16 {vr(d, 16)}, {vr(AC + 4, 4)}, {vr(p + 4, 4)}, {vr(d, 16)}"],
                [f"v_mfma_f32_32x32x16_bf16 {vr(d, 16)}, {vr(AC + 8, 4)}, {vr(p, 4)}, {vr(d, 16)}"],
                [f"v_mfma_f32_32x32x16_bf16 {vr(d, 16)}, {vr(AC + 12, 4)}, {vr(p + 4, 4)}, {vr(d, 16)}"]]

    def expo(i, pdst):
        d = DB[i % 2]
        o = [f"v_exp_f32 v{d + r}, v{d + r}" for r in range(16)]
        o.append("s_nop 0")
        o += [f"v_cvt_pk_bf16_f32 v{pdst + q}, v{d + 2 * q}, v{d + 2 * q + 1}" for q in range(8)]
        return o

    def pv(n, psrc):
        b = KF + 8 * (n % 4)
        return [[f"v_mfma_f32_32x32x16_bf16 {vr(OA, 16)}, {vr(b + 4 * u, 4)}, {vr(psrc + 4 * u, 4)}, {vr(OA, 16)}"] for u in range(2)]

    a("s_nop 1")
    for g in scale(0):
        a(g[0])
    a("s_nop 7")
    a("s_nop 3")
    pend = []
    for i in range(8):
        pdst = PA if i % 2 == 0 else PBb
        if i == 0:
            pdst = PA
        elif i == 1:
            pdst = PA
        else:
            pdst = PBb if i % 2 == 0 else PA
        val = expo(i, pdst)
        if i == 0:
            for q in range(8):
                val.append(f"v_and_b32 v{PBb + q}, v{PA + q}, v{MPK + q}")
                val.append(f"v_bfi_b32 v{PC + q}, v{MPK + q}, 0, v{PA + q}")
        extra = (scale(i + 1) if i + 1 < 8 else []) + pend
        emit_inter(val, extra, start=1, step=2 if len(extra) > 6 else 3)
        if i == 0:
            p0, p1 = pv(0, PBb), pv(1, PC)
            pend = [["s_waitcnt lgkmcnt(4)"] + p0[0], p0[1], p1[0], p1[1] + vread([4, 5])]
        else:
            n = i + 1
            issued = min(n + 3, 8)
            p0 = pv(n, pdst)
            pend = [[f"s_waitcnt lgkmcnt({2 * (issued - n)})"] + p0[0], p0[1] + (vread([n + 4]) if n + 4 <= 8 else [])]
    a("s_nop 1")
    for g in pend:
        for l in g:
            a(l)
    a("s_nop 7")
    a("s_nop 7")
    a(f"v_rcp_f32 v7, v{OA + 8}")
    a("s_nop 0")
    for r in range(8):
        a(f"v_mul_f32 v{OA + r}, v{OA + r}, v7")
    T = SBUF[2]
    for q in range(4):
        a(f"v_cvt_pk_bf16_f32 v{T + q}, v{OA + 2 * q}, v{OA + 2 * q + 1}")
    a("s_lshl_b32 s55, s51, 5")
    a("s_add_u32 s55, s55, s50")
    a("s_lshl_b32 s55, s55, 10")
    a(f"s_add_u32 s55, s55, {WS_O}")
    a(f"buffer_store_dwordx4 {vr(T, 4)}, v5, s[{SWS}:{SWS + 3}], s55 offen {STF}")
    a("s_sub_u32 s63, s52, 7")
    a.diag_end(1, 52 if DIAG != 2 else 63, "K2_END")
    a.label("K2_END")
    a("s_endpgm")
    return name, 256, 80


def gen_k3(a):
    name = "oproj_kernel"
    kernel_head(a, name)
    SW, SWS, SO = 12, 16, 20
    a("s_cmp_ge_u32 s2, 256")
    a("s_cbranch_scc1 K3_END")
    a.diag_begin()
    a("s_load_dwordx4 s[4:7], s[0:1], 16")
    a("s_load_dwordx2 s[8:9], s[0:1], 40")
    a("v_lshrrev_b32 v2, 6, v0")
    a("v_and_b32 v1, 63, v0")
    a("s_and_b32 s25, s2, 1")
    a("s_lshl_b32 s25, s25, 2")
    a("s_bfe_u32 s24, s2, 0x20003")
    a("s_add_u32 s25, s25, s24")
    a("v_readfirstlane_b32 s26, v2")
    a("s_bfe_u32 s24, s2, 0x20001")
    a("s_lshl_b32 s24, s24, 3")
    a("s_lshr_b32 s27, s2, 5")
    a("s_add_u32 s24, s24, s27")
    a("s_cmp_ge_u32 s26, 4")
    a("s_cbranch_scc1 K3_LOADER")
    a("v_and_b32 v3, 31, v1")
    a("v_lshrrev_b32 v4, 5, v1")
    a("s_and_b32 s27, s26, 1")
    a("s_lshr_b32 s28, s26, 1")
    a("v_lshlrev_b32 v11, 5, v3")
    a("v_lshl_add_u32 v11, v4, 4, v11")
    a("s_lshl_b32 s29, s27, 15")
    a("v_add_u32 v11, s29, v11")
    a("v_lshrrev_b32 v8, 2, v1")
    a("v_and_b32 v8, 3, v8")
    a("v_lshrrev_b32 v9, 1, v8")
    a("v_xor_b32 v9, s28, v9")
    a("v_lshlrev_b32 v9, 6, v9")
    a("v_lshl_add_u32 v8, v4, 2, v8")
    a("v_lshl_add_u32 v8, v8, 7, v9")
    a("v_lshrrev_b32 v9, 4, v1")
    a("v_and_b32 v9, 1, v9")
    a("v_lshl_add_u32 v8, v9, 5, v8")
    a("v_and_b32 v9, 1, v1")
    a("v_lshl_add_u32 v8, v9, 4, v8")
    a("v_lshrrev_b32 v9, 1, v1")
    a("v_and_b32 v9, 1, v9")
    a("v_lshl_add_u32 v8, v9, 3, v8")
    a("v_add_u32 v8, 0x10000, v8")
    a("v_lshlrev_b32 v10, 10, v3")
    a("v_lshl_add_u32 v10, v4, 4, v10")
    a("s_lshl_b32 s31, s24, 16")
    a("s_lshl_b32 s32, s27, 15")
    a("s_add_u32 s31, s31, s32")
    a("s_lshl_b32 s32, s25, 7")
    a("s_add_u32 s31, s31, s32")
    a("s_lshl_b32 s32, s28, 6")
    a("s_add_u32 s31, s31, s32")
    ACC = 16
    FR = 32
    for r in range(16):
        a(f"v_mov_b32 v{ACC + r}, 0")
    a("s_waitcnt lgkmcnt(0)")
    srd(a, SO, 6, 2048 * 512 * 2)

    def reads(s):
        f = FR + (s % 4) * 8
        a(f"ds_read_b128 {vr(f, 4)}, v11 offset:{s * 1024}")
        a(f"ds_read_b64_tr_b16 {vr(f + 4, 2)}, v8 offset:{s * 2048}")
        a(f"ds_read_b64_tr_b16 {vr(f + 6, 2)}, v8 offset:{s * 2048 + 1024}")

    NPH = 8
    SP = 32 // NPH
    for j in range(NPH):
        a("s_barrier")
        if j in (0, NPH - 1):
            a.stamp()
        pre = min(3, SP)
        for s in range(SP * j, SP * j + pre):
            reads(s)
        for s in range(SP * j, SP * j + SP):
            if s + 3 < SP * j + SP:
                reads(s + 3)
                a("s_waitcnt lgkmcnt(9)")
            else:
                a(f"s_waitcnt lgkmcnt({3 * (SP * j + SP - 1 - s)})")
            f = FR + (s % 4) * 8
            a(f"v_mfma_f32_32x32x16_bf16 {vr(ACC, 16)}, {vr(f + 4, 4)}, {vr(f, 4)}, {vr(ACC, 16)}")
    STG = 131072
    a("s_lshl_b32 s32, s27, 5")
    a("v_add_u32 v12, s32, v3")
    a("v_mul_u32_u24 v12, 144, v12")
    a("v_lshl_add_u32 v12, v4, 4, v12")
    a("s_lshl_b32 s32, s28, 6")
    a(f"s_add_u32 s32, s32, {STG}")
    a("v_add_u32 v12, s32, v12")
    a("v_lshrrev_b32 v13, 3, v1")
    a("s_lshl_b32 s32, s26, 4")
    a("v_add_u32 v13, s32, v13")
    a("v_and_b32 v14, 7, v1")
    a("v_lshlrev_b32 v15, 10, v13")
    a("v_lshl_add_u32 v15, v14, 4, v15")
    a("v_mul_u32_u24 v13, 144, v13")
    a("v_lshl_add_u32 v13, v14, 4, v13")
    a(f"v_add_u32 v13, {STG}, v13")
    a("s_lshl_b32 s31, s24, 16")
    a("s_lshl_b32 s32, s25, 7")
    a("s_add_u32 s31, s31, s32")
    T = 32
    for u in range(2):
        for q in range(4):
            a(f"v_cvt_pk_bf16_f32 v{T + 4 * u + q}, v{ACC + 8 * u + 2 * q}, v{ACC + 8 * u + 2 * q + 1}")
        a(f"ds_write_b128 v12, {vr(T + 4 * u, 4)} offset:{u * 32}")
    a("s_waitcnt lgkmcnt(0)")
    a("s_barrier")
    for u in range(2):
        a(f"ds_read_b128 {vr(T + 8 + 4 * u, 4)}, v13 offset:{u * 8 * 144}")
    for u in range(2):
        a(f"s_waitcnt lgkmcnt({1 - u})")
        a(f"buffer_store_dwordx4 {vr(T + 8 + 4 * u, 4)}, v15, s[{SO}:{SO + 3}], s31 offen offset:0 {STF3}" if u == 0 else
          f"buffer_store_dwordx4 {vr(T + 8 + 4 * u, 4)}, v16, s[{SO}:{SO + 3}], s31 offen {STF3}")
        if u == 0:
            a("v_add_u32 v16, 8192, v15")
    a.diag_end(2, 26, "K3_END")
    a("s_endpgm")
    a.label("K3_LOADER")
    a("s_sub_u32 s26, s26, 4")
    a("v_lshlrev_b32 v5, 4, v1")
    a("v_lshrrev_b32 v6, 4, v1")
    a("v_and_b32 v6, 1, v6")
    a("v_lshlrev_b32 v6, 2, v6")
    a("v_and_b32 v7, 7, v1")
    a("v_xor_b32 v6, v6, v7")
    a("v_lshlrev_b32 v6, 4, v6")
    a("v_lshrrev_b32 v7, 3, v1")
    a("v_lshl_add_u32 v6, v7, 10, v6")
    a("s_and_b32 s27, s26, 1")
    a("s_lshr_b32 s28, s26, 1")
    a("s_lshl_b32 s33, s24, 16")
    a("s_lshl_b32 s34, s27, 15")
    a("s_add_u32 s33, s33, s34")
    a("s_lshl_b32 s35, s28, 11")
    a("s_add_u32 s33, s33, s35")
    a(f"s_add_u32 s33, s33, {WS_O}")
    a("s_add_u32 s34, s34, s35")
    a("s_lshl_b32 s35, s26, 14")
    a("s_lshl_b32 s36, s25, 7")
    a("s_add_u32 s35, s35, s36")
    a("s_lshl_b32 s36, s26, 11")
    a("s_add_u32 s36, s36, 0x10000")
    a("s_waitcnt lgkmcnt(0)")
    srd(a, SW, 4, 512 * 512 * 2)
    srd(a, SWS, 8, WS_BYTES)
    a("s_lshr_b32 s39, s2, 3")

    def dma3(j):
        a(f"s_add_u32 s40, s39, {j}")
        a("s_and_b32 s40, s40, 7")
        a("s_lshl_b32 s41, s40, 12")
        a("s_add_u32 s41, s41, s33")
        a("s_lshl_b32 s42, s40, 16")
        a("s_add_u32 s42, s42, s35")
        for i in range(2):
            a(f"s_add_u32 s37, s41, {i * 1024}")
            a(f"s_add_u32 m0, s34, {j * 4096 + i * 1024}")
            a("s_nop 0")
            a(f"buffer_load_dwordx4 v5, s[{SWS}:{SWS + 3}], s37 offen lds")
        for i in range(2):
            a(f"s_add_u32 s37, s42, {i * 8192}")
            a(f"s_add_u32 m0, s36, {j * 8192 + i * 1024}")
            a("s_nop 0")
            a(f"buffer_load_dwordx4 v6, s[{SW}:{SW + 3}], s37 offen lds")

    LA3 = 4
    for j in range(LA3):
        dma3(j)
    for j in range(NPH):
        issued = min(j + LA3, NPH)
        a(f"s_waitcnt vmcnt({4 * (issued - j - 1)})")
        a("s_barrier")
        if j + LA3 < NPH:
            dma3(j + LA3)
    a.label("K3_END")
    a("s_endpgm")
    return name, 64, 48


def main():
    a = Asm()
    hdr = open("standalone__sliding_block__prompt.s.ref").read().split("\n")
    for line in hdr:
        if line.startswith("; @launch") or not line.startswith(";"):
            break
        a.raw(line)
    a.raw("; @launch kernel=qkv_kernel grid=(256,1,1) block=(512,1,1) lds=131072")
    a.raw("; @launch kernel=attn_kernel grid=(256,1,1) block=(512,1,1) lds=33280")
    a.raw("; @launch kernel=oproj_kernel grid=(256,1,1) block=(512,1,1) lds=140288")
    a.raw('.amdgcn_target "amdgcn-amd-amdhsa--gfx950"')
    a.raw(".text")
    ks = [gen_k1(a), gen_k2(a), gen_k3(a)]
    a.raw('.section .rodata,"a"')
    for name, v, s in ks:
        kd(a, name, v, s)
    txt = a.text()
    if int(os.environ.get("LOADER_FIRST", "1")):
        for k, end in (("K1", "K1_END"), ("K3", "K3_END")):
            br = f"    s_cmp_ge_u32 s26, 4\n    s_cbranch_scc1 {k}_LOADER\n"
            i0 = txt.index(br)
            i1 = txt.index(f"{k}_LOADER:\n")
            i2 = txt.index(f"{end}:\n")
            comp = txt[i0 + len(br):i1]
            load = txt[i1 + len(f"{k}_LOADER:\n"):i2]
            txt = (txt[:i0] + f"    s_cmp_lt_u32 s26, 4\n    s_cbranch_scc1 {k}_COMPUTE\n" + load + "    s_endpgm\n"
                   + f"{k}_COMPUTE:\n" + comp + txt[i2:])
    open(OUT, "w").write(txt)


main()
```

```python
import sys

OUT = sys.argv[1] if len(sys.argv) > 1 else "standalone__sliding_block__prompt.s"

MB = 1 << 20
WS_Q, WS_K, WS_V, WS_O = 0, 65536, 131072, 6 * MB
HS = 196608
WS_BYTES = 8 * MB


import os
DIAG = int(os.environ.get("DIAG", "0"))
STF = os.environ.get("STF", "sc1")
STF3 = os.environ.get("STF3", "sc1")


class Asm:
    def __init__(self):
        self.lines = []
        self.nst = 0

    def stamp(self):
        if DIAG:
            i = self.nst
            self.nst += 1
            self(f"s_memtime s[{82 + 2 * i}:{83 + 2 * i}]")

    def diag_begin(self):
        if DIAG:
            self.nst = 0
            self("s_memrealtime s[100:101]")
            self.stamp()

    def diag_end(self, kidx, wave_sreg, lab):
        if not DIAG:
            return
        self.stamp()
        self("s_waitcnt vmcnt(0) lgkmcnt(0)")
        self.stamp()
        self("s_memrealtime s[98:99]")
        self("s_load_dwordx2 s[76:77], s[0:1], 40")
        self("s_waitcnt lgkmcnt(0)")
        self(f"s_cmp_lg_u32 s{wave_sreg}, 0")
        self(f"s_cbranch_scc1 {lab}")
        self("s_and_b32 s77, s77, 0xffff")
        self("s_mov_b32 s78, 0x2000000")
        self("s_mov_b32 s79, 0x00020000")
        self("s_lshl_b32 s80, s2, 7")
        self(f"s_add_u32 s80, s80, {16 * MB + kidx * 65536}")
        self("v_mov_b32 v1, 0")
        self("v_mov_b32 v2, s100")
        self("buffer_store_dword v2, v1, s[76:79], s80 offen")
        self("v_mov_b32 v2, s98")
        self("buffer_store_dword v2, v1, s[76:79], s80 offen offset:4")
        for i in range(self.nst):
            self(f"s_sub_u32 s81, s{82 + 2 * i}, s82")
            self("v_mov_b32 v2, s81")
            self(f"buffer_store_dword v2, v1, s[76:79], s80 offen offset:{8 + 4 * i}")

    def __call__(self, s):
        self.lines.append("    " + s)

    def label(self, l):
        self.lines.append(l + ":")

    def raw(self, s):
        self.lines.append(s)

    def text(self):
        return "\n".join(self.lines) + "\n"


def vr(base, n):
    return f"v[{base}:{base + n - 1}]"


def srd(a, d, ptr_lo, nbytes):
    a(f"s_mov_b32 s{d}, s{ptr_lo}")
    a(f"s_and_b32 s{d + 1}, s{ptr_lo + 1}, 0xffff")
    a(f"s_mov_b32 s{d + 2}, {nbytes:#x}")
    a(f"s_mov_b32 s{d + 3}, 0x00020000")


def kernel_head(a, name):
    a.raw(f".globl {name}")
    a.raw(".p2align 8")
    a.raw(f".type {name},@function")
    a.label(name)


def kd(a, name, vgpr, sgpr):
    acc = (vgpr + 3) // 4 * 4
    a.raw(".p2align 6")
    a.raw(f".amdhsa_kernel {name}")
    a.raw(f"  .amdhsa_next_free_vgpr {vgpr}")
    a.raw(f"  .amdhsa_next_free_sgpr {102 if DIAG else sgpr}")
    a.raw(f"  .amdhsa_accum_offset {acc}")
    a.raw("  .amdhsa_group_segment_fixed_size 0")
    a.raw("  .amdhsa_kernarg_size 48")
    a.raw("  .amdhsa_user_sgpr_count 2")
    a.raw("  .amdhsa_user_sgpr_kernarg_segment_ptr 1")
    a.raw("  .amdhsa_system_sgpr_workgroup_id_x 1")
    a.raw(".end_amdhsa_kernel")


def gen_k1(a):
    name = "qkv_kernel"
    kernel_head(a, name)
    SX, SW, SWS = 12, 16, 20
    a("s_cmp_ge_u32 s2, 256")
    a("s_cbranch_scc1 K1_END")
    a.diag_begin()
    a("s_load_dwordx4 s[4:7], s[0:1], 0")
    a("s_load_dwordx2 s[8:9], s[0:1], 40")
    a("v_lshrrev_b32 v2, 6, v0")
    a("v_and_b32 v1, 63, v0")
    MAP1 = os.environ.get("MAP1", "1x8")
    if MAP1 == "1x8":
        a("s_and_b32 s24, s2, 7")
        a("s_lshr_b32 s25, s2, 3")
        a("v_readfirstlane_b32 s26, v2")
        a("s_nop 0")
    elif MAP1 == "4x2":
        a("s_and_b32 s24, s2, 1")
        a("s_lshl_b32 s24, s24, 2")
        a("s_bfe_u32 s25, s2, 0x20003")
        a("s_add_u32 s24, s24, s25")
        a("v_readfirstlane_b32 s26, v2")
        a("s_bfe_u32 s25, s2, 0x20001")
        a("s_lshl_b32 s25, s25, 3")
        a("s_lshr_b32 s27, s2, 5")
        a("s_add_u32 s25, s25, s27")
    elif MAP1 == "2x4":
        a("s_and_b32 s24, s2, 3")
        a("s_lshl_b32 s24, s24, 1")
        a("s_bfe_u32 s25, s2, 0x10003")
        a("s_add_u32 s24, s24, s25")
        a("v_readfirstlane_b32 s26, v2")
        a("s_bfe_u32 s25, s2, 0x10002")
        a("s_lshl_b32 s25, s25, 4")
        a("s_lshr_b32 s27, s2, 4")
        a("s_add_u32 s25, s25, s27")
    a("s_cmp_ge_u32 s26, 4")
    a("s_cbranch_scc1 K1_LOADER")
    a("v_and_b32 v3, 31, v1")
    a("v_lshrrev_b32 v4, 5, v1")
    a("s_and_b32 s27, s26, 1")
    a("s_lshr_b32 s28, s26, 1")
    a("s_lshl_b32 s29, s27, 5")
    a("v_add_u32 v9, s29, v3")
    a("v_lshrrev_b32 v10, 1, v9")
    a("v_and_b32 v10, 7, v10")
    a("v_lshlrev_b32 v9, 7, v9")
    for s in range(4):
        a(f"v_add_u32 v11, {2 * s}, v4")
        a("v_xor_b32 v11, v11, v10")
        a(f"v_lshl_add_u32 v{12 + s}, v11, 4, v9")
    a("v_lshrrev_b32 v9, 2, v1")
    a("v_and_b32 v9, 3, v9")
    a("v_lshrrev_b32 v10, 1, v9")
    a("v_xor_b32 v10, s28, v10")
    a("v_lshlrev_b32 v10, 6, v10")
    a("v_lshl_add_u32 v9, v4, 3, v9")
    a("v_lshl_add_u32 v10, v9, 7, v10")
    a("v_lshrrev_b32 v9, 4, v1")
    a("v_and_b32 v9, 1, v9")
    a("v_lshl_add_u32 v10, v9, 5, v10")
    a("v_and_b32 v9, 3, v1")
    a("v_lshl_add_u32 v10, v9, 3, v10")
    a("v_add_u32 v10, 0x8000, v10")
    a("v_add_u32 v11, 0xc000, v10")
    a("v_lshlrev_b32 v5, 5, v3")
    a("v_lshl_add_u32 v5, v4, 4, v5")
    a("v_and_b32 v6, 15, v1")
    a("v_lshlrev_b32 v6, 5, v6")
    a("v_lshl_add_u32 v6, v4, 4, v6")
    a("v_lshrrev_b32 v9, 4, v3")
    a(f"v_mul_u32_u24 v9, {HS}, v9")
    a("v_add_u32 v6, v9, v6")
    ACC = 16
    FR = 64
    for r in range(48):
        a(f"v_mov_b32 v{ACC + r}, 0")
    a(f"s_mul_i32 s31, s24, {4 * HS}")
    a(f"s_mul_i32 s32, s28, {2 * HS}")
    a("s_add_u32 s31, s31, s32")
    a("s_lshl_b32 s32, s25, 11")
    a("s_add_u32 s31, s31, s32")
    a("s_lshl_b32 s32, s27, 10")
    a("s_add_u32 s31, s31, s32")
    a(f"s_add_u32 s32, s31, {HS}")
    a(f"s_add_u32 s33, s31, {WS_K}")
    a(f"s_add_u32 s34, s33, {HS}")
    a(f"s_add_u32 s35, s31, {WS_V}")
    a("s_waitcnt lgkmcnt(0)")
    srd(a, SWS, 8, WS_BYTES)

    def reads(c, s):
        b = c % 4
        f = FR + ((4 * c + s) % 2) * 16
        a(f"ds_read_b128 {vr(f, 4)}, v{12 + s} offset:{b * 8192}")
        breg = 10 if b < 2 else 11
        boff = (b % 2) * 24576 + s * 2048
        for p in range(3):
            a(f"ds_read_b64_tr_b16 {vr(f + 4 + 4 * p, 2)}, v{breg} offset:{boff + p * 8192}")
            a(f"ds_read_b64_tr_b16 {vr(f + 6 + 4 * p, 2)}, v{breg} offset:{boff + p * 8192 + 512}")

    for c in range(8):
        a("s_barrier")
        if c in (0, 1, 4, 7):
            a.stamp()
        reads(c, 0)
        for s in range(4):
            if s + 1 < 4:
                reads(c, s + 1)
                a("s_waitcnt lgkmcnt(7)")
            else:
                a("s_waitcnt lgkmcnt(0)")
            f = FR + ((4 * c + s) % 2) * 16
            af = vr(f, 4)
            a(f"v_mfma_f32_32x32x16_bf16 {vr(ACC, 16)}, {vr(f + 4, 4)}, {af}, {vr(ACC, 16)}")
            a(f"v_mfma_f32_32x32x16_bf16 {vr(ACC + 16, 16)}, {vr(f + 8, 4)}, {af}, {vr(ACC + 16, 16)}")
            a(f"v_mfma_f32_32x32x16_bf16 {vr(ACC + 32, 16)}, {af}, {vr(f + 12, 4)}, {vr(ACC + 32, 16)}")
    a("s_nop 7")
    a("s_nop 3")
    T = 64
    for tile, soffs in ((0, (31, 32)), (1, (33, 34))):
        for hd in range(2):
            base = ACC + 16 * tile + 8 * hd
            t = T + 4 * (2 * tile + hd)
            for q in range(4):
                a(f"v_cvt_pk_bf16_f32 v{t + q}, v{base + 2 * q}, v{base + 2 * q + 1}")
            a(f"buffer_store_dwordx4 {vr(t, 4)}, v5, s[{SWS}:{SWS + 3}], s{soffs[hd]} offen {STF}")
    for u in range(2):
        base = ACC + 32 + 8 * u
        t = T + 16 + 4 * u
        for q in range(4):
            a(f"v_cvt_pk_bf16_f32 v{t + q}, v{base + 2 * q}, v{base + 2 * q + 1}")
        a(f"buffer_store_dwordx4 {vr(t, 4)}, v6, s[{SWS}:{SWS + 3}], s35 offen offset:{u * 512} {STF}")
    a.diag_end(0, 26, "K1_END")
    a("s_endpgm")
    a.label("K1_LOADER")
    a("s_sub_u32 s26, s26, 4")
    a("v_lshrrev_b32 v5, 3, v1")
    a("v_and_b32 v6, 7, v1")
    a("s_and_b32 s27, s26, 1")
    a("v_lshrrev_b32 v7, 4, v1")
    a("s_lshl_b32 s29, s27, 2")
    a("v_add_u32 v7, s29, v7")
    a("v_xor_b32 v7, v7, v6")
    a("v_lshlrev_b32 v7, 4, v7")
    a("v_lshl_add_u32 v7, v5, 10, v7")
    a("v_lshrrev_b32 v8, 4, v1")
    a("v_and_b32 v8, 1, v8")
    a("v_lshlrev_b32 v8, 2, v8")
    a("v_xor_b32 v8, v8, v6")
    a("v_lshlrev_b32 v8, 4, v8")
    a("v_mul_u32_u24 v9, 3072, v5")
    a("v_add_u32 v8, v8, v9")
    a("s_lshl_b32 s29, s25, 16")
    a("s_lshl_b32 s30, s26, 13")
    a("s_add_u32 s29, s29, s30")
    a("s_lshl_b32 s30, s26, 10")
    a("s_mul_i32 s31, s26, 49152")
    a("s_lshl_b32 s32, s24, 7")
    a("s_add_u32 s31, s31, s32")
    a("s_lshl_b32 s32, s26, 11")
    a("s_add_u32 s32, s32, 0x8000")
    a("s_waitcnt lgkmcnt(0)")
    srd(a, SX, 4, 2048 * 512 * 2)
    srd(a, SW, 6, 512 * 1536 * 2)

    a("s_lshr_b32 s39, s2, 3")

    def dma(c):
        b = c % 4
        a(f"s_add_u32 s36, s39, {c}")
        a("s_and_b32 s36, s36, 7")
        a("s_lshl_b32 s37, s36, 7")
        a("s_add_u32 s37, s37, s29")
        a("s_mul_i32 s38, s36, 196608")
        a("s_add_u32 s38, s38, s31")
        for i2 in range(2):
            a(f"s_add_u32 s33, s37, {i2 * 32768}")
            a(f"s_add_u32 m0, s30, {b * 8192 + i2 * 4096}")
            a("s_nop 0")
            a(f"buffer_load_dwordx4 v7, s[{SX}:{SX + 3}], s33 offen lds")
        for p in range(3):
            for i2 in range(2):
                a(f"s_add_u32 s33, s38, {i2 * 8 * 3072 + p * 1024}")
                a(f"s_add_u32 m0, s32, {b * 24576 + p * 8192 + i2 * 1024}")
                a("s_nop 0")
                a(f"buffer_load_dwordx4 v8, s[{SW}:{SW + 3}], s33 offen lds")

    dma(0)
    dma(1)
    issued = 2
    for c in range(8):
        a(f"s_waitcnt vmcnt({8 * (issued - c - 1)})")
        a("s_barrier")
        while issued < min(c + 4, 8):
            dma(issued)
            issued += 1
    a.label("K1_END")
    a("s_endpgm")
    return name, 96, 40


def gen_k2(a):
    name = "attn_kernel"
    kernel_head(a, name)
    SWS = 12
    MK = 16
    a("s_cmp_ge_u32 s2, 256")
    a("s_cbranch_scc1 K2_END")
    a.diag_begin()
    a("s_load_dwordx2 s[8:9], s[0:1], 40")
    a("s_load_dwordx2 s[10:11], s[0:1], 16")
    a("v_lshrrev_b32 v2, 6, v0")
    a("v_and_b32 v1, 63, v0")
    a("s_and_b32 s50, s2, 7")
    a("s_lshl_b32 s50, s50, 2")
    a("s_bfe_u32 s51, s2, 0x20003")
    a("s_add_u32 s50, s50, s51")
    a("v_readfirstlane_b32 s52, v2")
    a("s_lshr_b32 s51, s2, 5")
    a("v_and_b32 v3, 31, v1")
    a("v_lshrrev_b32 v4, 5, v1")
    a("v_lshlrev_b32 v5, 5, v3")
    a("v_lshl_add_u32 v5, v4, 4, v5")
    a("v_lshlrev_b32 v2, 4, v1")
    a(f"s_mul_i32 s53, s50, {HS}")
    a("s_lshl_b32 s56, s51, 3")
    a("s_add_u32 s51, s56, s52")
    a("s_lshl_b32 s54, s51, 10")
    a("s_add_u32 s54, s54, s53")
    a("s_lshl_b32 s57, s52, 1")
    a("s_add_u32 s58, s56, s57")
    a("s_sub_i32 s58, s58, 8")
    a("s_add_i32 s59, s58, 1")
    a("s_max_i32 s58, s58, 0")
    a("s_max_i32 s59, s59, 0")
    a("s_lshl_b32 s58, s58, 10")
    a("s_lshl_b32 s59, s59, 10")
    a("s_add_u32 s58, s58, s53")
    a("s_add_u32 s59, s59, s53")
    a("s_lshl_b32 s57, s57, 10")
    a("s_lshl_b32 s60, s52, 10")
    a("v_add_u32 v6, s60, v5")
    a("s_waitcnt lgkmcnt(0)")
    srd(a, SWS, 8, WS_BYTES)
    QF, MPK, AC, OA, BIAS, PK = 8, 12, 20, 36, 52, 68
    SBUF = [132, 148, 164]
    KF = 180
    PA, PBb, PC = 216, 224, 232
    for k, (sg, ws, lo) in enumerate(((58, WS_K, 0), (59, WS_K, 1024), (58, WS_V, 16384), (59, WS_V, 17408))):
        a(f"s_add_u32 s61, s{sg}, {ws}")
        a(f"s_add_u32 m0, s57, {lo}")
        a("s_nop 0")
        a(f"buffer_load_dwordx4 v2, s[{SWS}:{SWS + 3}], s61 offen lds")
        if k == 1:
            a(f"buffer_load_dwordx4 {vr(QF, 4)}, v5, s[{SWS}:{SWS + 3}], s54 offen")
    srd(a, 64, 10, 512 * 512 * 2)
    a("s_lshr_b32 s68, s2, 3")
    a("s_lshl_b32 s68, s68, 4")
    a("s_lshl_b32 s69, s52, 1")
    a("s_add_u32 s68, s68, s69")
    a("s_lshl_b32 s68, s68, 10")
    a("s_and_b32 s69, s2, 1")
    a("s_lshl_b32 s69, s69, 9")
    a("s_add_u32 s68, s68, s69")
    a("v_lshlrev_b32 v7, 4, v3")
    a("v_lshl_add_u32 v7, v4, 10, v7")
    a("buffer_load_dwordx4 v[252:255], v7, s[64:67], s68 offen")
    a("v_lshrrev_b32 v7, 3, v3")
    a("v_lshlrev_b32 v7, 1, v7")
    a("v_bfe_u32 v2, v3, 1, 1")
    a("v_add_u32 v7, v7, v2")
    a("v_bfe_u32 v2, v3, 2, 1")
    a("v_xor_b32 v2, v2, v4")
    a("v_lshl_add_u32 v7, v2, 6, v7")
    a("v_and_b32 v2, 1, v3")
    a("v_lshlrev_b32 v2, 4, v2")
    a(f"v_mov_b32 v{BIAS}, 0x3eb9")
    a(f"v_mov_b32 v{BIAS + 1}, 0xba2c")
    a(f"v_lshlrev_b32 v{BIAS}, v2, v{BIAS}")
    a(f"v_lshlrev_b32 v{BIAS + 1}, v2, v{BIAS + 1}")
    for t in range(8):
        a(f"v_cmp_eq_u32 s[{MK + 2 * t}:{MK + 2 * t + 1}], {t}, v7")
    a("s_nop 1")
    for t in range(8):
        a(f"v_cndmask_b32 v{AC + t}, 0, v{BIAS}, s[{MK + 2 * t}:{MK + 2 * t + 1}]")
        a(f"v_cndmask_b32 v{AC + 8 + t}, 0, v{BIAS + 1}, s[{MK + 2 * t}:{MK + 2 * t + 1}]")
    a("v_lshlrev_b32 v7, 2, v4")
    a("v_sub_u32 v7, v3, v7")
    for r in range(16):
        c = 8 * (r // 4) + (r % 4)
        a(f"v_cmp_le_i32 s[{MK + 2 * r}:{MK + 2 * r + 1}], {c}, v7")
    a("v_mov_b32 v3, 0xffff")
    a("v_mov_b32 v7, 0xffff0000")
    a("s_nop 1")
    for j in range(8):
        a(f"v_cndmask_b32 v{MPK + j}, 0, v3, s[{MK + 4 * j}:{MK + 4 * j + 1}]")
        a(f"v_cndmask_b32 v{PA + j}, 0, v7, s[{MK + 4 * j + 2}:{MK + 4 * j + 3}]")
    for j in range(8):
        a(f"v_or_b32 v{MPK + j}, v{MPK + j}, v{PA + j}")
    for r in range(16):
        a(f"v_mov_b32 v{OA + r}, 0")
    a("v_mov_b32 v3, 0xff800000")
    a("v_mov_b32 v7, 0xff800000")
    a("v_mov_b32 v4, 0x3f803f80")
    a.stamp()
    a("s_waitcnt vmcnt(3)")
    a("s_barrier")
    a.stamp()
    korder = [0, 8, 1, 2, 3, 4, 5, 6, 7]
    for i in korder:
        a(f"ds_read_b128 {vr(KF + 4 * i, 4)}, v6 offset:{i * 1024}")

    def sbuf(i):
        if i == 0:
            return SBUF[0]
        if i == 8:
            return SBUF[1]
        return [SBUF[2], SBUF[0], SBUF[1]][(i - 1) % 3]

    def smfma(n):
        i = korder[n]
        return [f"s_waitcnt lgkmcnt({8 - n})",
                f"v_mfma_f32_32x32x16_bf16 {vr(sbuf(i), 16)}, {vr(KF + 4 * i, 4)}, {vr(QF, 4)}, 0"]

    vorder = [8, 0, 1, 2, 3, 4, 5, 6, 7]

    def vread(ns):
        o = ["s_mov_b32 exec_lo, 0xffff", "s_mov_b32 exec_hi, 0xffff"]
        for n in ns:
            i = vorder[n]
            b = KF + 8 * (n % 4)
            o += [f"ds_read_b128 {vr(b + 4 * u, 4)}, v6 offset:{16384 + i * 1024 + u * 512}" for u in range(2)]
        o.append("s_mov_b64 exec, -1")
        return o

    def emit_inter(valu, extra, start=1, step=None):
        n = len(extra)
        if step is None:
            step = max(1, (len(valu) - start) // max(n, 1))
        k = 0
        for idx, l in enumerate(valu):
            a(l)
            if k < n and idx >= start and (idx - start) % step == 0:
                for x in extra[k]:
                    a(x)
                k += 1
        while k < n:
            for x in extra[k]:
                a(x)
            k += 1

    def proc(src, slot):
        o = []
        for q in range(8):
            m = (3, 7)[q & 1]
            o.append(f"v_max3_f32 v{m}, v{m}, v{src + 2 * q}, v{src + 2 * q + 1}")
            o.append(f"v_cvt_pk_bf16_f32 v{PK + 8 * slot + q}, v{src + 2 * q}, v{src + 2 * q + 1}")
        return o

    for n in range(3):
        for l in smfma(n):
            a(l)
    a("s_nop 7")
    a("s_nop 1")
    a("s_cmp_ge_u32 s51, 8")
    a("s_cbranch_scc1 K2_HAVE0")
    for r in range(16):
        a(f"v_mov_b32 v{SBUF[0] + r}, 0xf14a0000")
    a.label("K2_HAVE0")
    for r in range(16):
        a(f"v_cndmask_b32 v{SBUF[1] + r}, v{SBUF[0] + r}, v{SBUF[1] + r}, s[{MK + 2 * r}:{MK + 2 * r + 1}]")
    for l in smfma(3):
        a(l)
    for l in proc(SBUF[1], 0):
        a(l)
    for i in range(1, 8):
        if i + 3 < 9:
            for l in smfma(i + 3):
                a(l)
        if i == 5:
            for r in range(16):
                a(f"v_mov_b32 v{KF + r}, v4")
            a("s_waitcnt vmcnt(1)")
            a("s_barrier")
            for l in vread([0, 1]):
                a(l)
        if i == 6:
            for r in range(16):
                a(f"v_mov_b32 v{KF + 16 + r}, v4")
            for l in vread([2, 3]):
                a(l)
        a(f"s_cmp_ge_u32 s51, {8 - i}")
        a(f"s_cbranch_scc1 K2_T{i}_OK")
        for q in range(8):
            a(f"v_mov_b32 v{PK + 8 * i + q}, 0xf14af14a")
        a("s_nop 3")
        a(f"s_branch K2_T{i}_DONE")
        a.label(f"K2_T{i}_OK")
        for l in proc(sbuf(i), i):
            a(l)
        a.label(f"K2_T{i}_DONE")
    a.stamp()
    a("v_max_f32 v3, v3, v7")
    a("v_mov_b32 v7, v3")
    a("s_nop 1")
    a("v_permlane32_swap_b32 v3, v7")
    a("s_nop 1")
    a("v_max_f32 v3, v3, v7")
    a("v_cvt_pk_bf16_f32 v3, 0, v3")
    a("v_mul_f32 v3, 0xbeb8aa00, v3")
    for r in range(16):
        a(f"v_mov_b32 v{BIAS + r}, v3")
    DB = [SBUF[0], SBUF[1]]

    def scale(i):
        d = DB[i % 2]
        p = PK + 8 * i
        return [[f"v_mfma_f32_32x32x16_bf16 {vr(d, 16)}, {vr(AC, 4)}, {vr(p, 4)}, {vr(BIAS, 16)}"],
                [f"v_mfma_f32_32x32x16_bf16 {vr(d, 16)}, {vr(AC + 4, 4)}, {vr(p + 4, 4)}, {vr(d, 16)}"],
                [f"v_mfma_f32_32x32x16_bf16 {vr(d, 16)}, {vr(AC + 8, 4)}, {vr(p, 4)}, {vr(d, 16)}"],
                [f"v_mfma_f32_32x32x16_bf16 {vr(d, 16)}, {vr(AC + 12, 4)}, {vr(p + 4, 4)}, {vr(d, 16)}"]]

    def expo(i, pdst):
        d = DB[i % 2]
        o = [f"v_exp_f32 v{d + r}, v{d + r}" for r in range(16)]
        o.append("s_nop 0")
        o += [f"v_cvt_pk_bf16_f32 v{pdst + q}, v{d + 2 * q}, v{d + 2 * q + 1}" for q in range(8)]
        return o

    def pv(n, psrc):
        b = KF + 8 * (n % 4)
        return [[f"v_mfma_f32_32x32x16_bf16 {vr(OA, 16)}, {vr(b + 4 * u, 4)}, {vr(psrc + 4 * u, 4)}, {vr(OA, 16)}"] for u in range(2)]

    a("s_nop 1")
    for g in scale(0):
        a(g[0])
    a("s_nop 7")
    a("s_nop 3")
    pend = []
    for i in range(8):
        pdst = PA if i % 2 == 0 else PBb
        if i == 0:
            pdst = PA
        elif i == 1:
            pdst = PA
        else:
            pdst = PBb if i % 2 == 0 else PA
        val = expo(i, pdst)
        if i == 0:
            for q in range(8):
                val.append(f"v_and_b32 v{PBb + q}, v{PA + q}, v{MPK + q}")
                val.append(f"v_bfi_b32 v{PC + q}, v{MPK + q}, 0, v{PA + q}")
        extra = (scale(i + 1) if i + 1 < 8 else []) + pend
        emit_inter(val, extra, start=1, step=2 if len(extra) > 6 else 3)
        if i == 0:
            p0, p1 = pv(0, PBb), pv(1, PC)
            pend = [["s_waitcnt lgkmcnt(4)"] + p0[0], p0[1], p1[0], p1[1] + vread([4, 5])]
        else:
            n = i + 1
            issued = min(n + 3, 8)
            p0 = pv(n, pdst)
            pend = [[f"s_waitcnt lgkmcnt({2 * (issued - n)})"] + p0[0], p0[1] + (vread([n + 4]) if n + 4 <= 8 else [])]
    a("s_nop 1")
    for g in pend:
        for l in g:
            a(l)
    a("s_nop 7")
    a("s_nop 7")
    a(f"v_rcp_f32 v7, v{OA + 8}")
    a("s_nop 0")
    for r in range(8):
        a(f"v_mul_f32 v{OA + r}, v{OA + r}, v7")
    T = SBUF[2]
    for q in range(4):
        a(f"v_cvt_pk_bf16_f32 v{T + q}, v{OA + 2 * q}, v{OA + 2 * q + 1}")
    a("s_lshl_b32 s55, s51, 5")
    a("s_add_u32 s55, s55, s50")
    a("s_lshl_b32 s55, s55, 10")
    a(f"s_add_u32 s55, s55, {WS_O}")
    a(f"buffer_store_dwordx4 {vr(T, 4)}, v5, s[{SWS}:{SWS + 3}], s55 offen {STF}")
    a("s_sub_u32 s63, s52, 7")
    a.diag_end(1, 52 if DIAG != 2 else 63, "K2_END")
    a.label("K2_END")
    a("s_endpgm")
    return name, 256, 80


def gen_k3(a):
    name = "oproj_kernel"
    kernel_head(a, name)
    SW, SWS, SO = 12, 16, 20
    a("s_cmp_ge_u32 s2, 256")
    a("s_cbranch_scc1 K3_END")
    a.diag_begin()
    a("s_load_dwordx4 s[4:7], s[0:1], 16")
    a("s_load_dwordx2 s[8:9], s[0:1], 40")
    a("v_lshrrev_b32 v2, 6, v0")
    a("v_and_b32 v1, 63, v0")
    a("s_and_b32 s25, s2, 1")
    a("s_lshl_b32 s25, s25, 2")
    a("s_bfe_u32 s24, s2, 0x20003")
    a("s_add_u32 s25, s25, s24")
    a("v_readfirstlane_b32 s26, v2")
    a("s_bfe_u32 s24, s2, 0x20001")
    a("s_lshl_b32 s24, s24, 3")
    a("s_lshr_b32 s27, s2, 5")
    a("s_add_u32 s24, s24, s27")
    a("s_cmp_ge_u32 s26, 4")
    a("s_cbranch_scc1 K3_LOADER")
    a("v_and_b32 v3, 31, v1")
    a("v_lshrrev_b32 v4, 5, v1")
    a("s_and_b32 s27, s26, 1")
    a("s_lshr_b32 s28, s26, 1")
    a("v_lshlrev_b32 v11, 5, v3")
    a("v_lshl_add_u32 v11, v4, 4, v11")
    a("s_lshl_b32 s29, s27, 15")
    a("v_add_u32 v11, s29, v11")
    a("v_lshrrev_b32 v8, 2, v1")
    a("v_and_b32 v8, 3, v8")
    a("v_lshrrev_b32 v9, 1, v8")
    a("v_xor_b32 v9, s28, v9")
    a("v_lshlrev_b32 v9, 6, v9")
    a("v_lshl_add_u32 v8, v4, 2, v8")
    a("v_lshl_add_u32 v8, v8, 7, v9")
    a("v_lshrrev_b32 v9, 4, v1")
    a("v_and_b32 v9, 1, v9")
    a("v_lshl_add_u32 v8, v9, 5, v8")
    a("v_and_b32 v9, 1, v1")
    a("v_lshl_add_u32 v8, v9, 4, v8")
    a("v_lshrrev_b32 v9, 1, v1")
    a("v_and_b32 v9, 1, v9")
    a("v_lshl_add_u32 v8, v9, 3, v8")
    a("v_add_u32 v8, 0x10000, v8")
    a("v_lshlrev_b32 v10, 10, v3")
    a("v_lshl_add_u32 v10, v4, 4, v10")
    a("s_lshl_b32 s31, s24, 16")
    a("s_lshl_b32 s32, s27, 15")
    a("s_add_u32 s31, s31, s32")
    a("s_lshl_b32 s32, s25, 7")
    a("s_add_u32 s31, s31, s32")
    a("s_lshl_b32 s32, s28, 6")
    a("s_add_u32 s31, s31, s32")
    ACC = 16
    FR = 32
    for r in range(16):
        a(f"v_mov_b32 v{ACC + r}, 0")
    a("s_waitcnt lgkmcnt(0)")
    srd(a, SO, 6, 2048 * 512 * 2)

    def reads(s):
        f = FR + (s % 4) * 8
        a(f"ds_read_b128 {vr(f, 4)}, v11 offset:{s * 1024}")
        a(f"ds_read_b64_tr_b16 {vr(f + 4, 2)}, v8 offset:{s * 2048}")
        a(f"ds_read_b64_tr_b16 {vr(f + 6, 2)}, v8 offset:{s * 2048 + 1024}")

    NPH = 8
    SP = 32 // NPH
    for j in range(NPH):
        a("s_barrier")
        if j in (0, NPH - 1):
            a.stamp()
        pre = min(3, SP)
        for s in range(SP * j, SP * j + pre):
            reads(s)
        for s in range(SP * j, SP * j + SP):
            if s + 3 < SP * j + SP:
                reads(s + 3)
                a("s_waitcnt lgkmcnt(9)")
            else:
                a(f"s_waitcnt lgkmcnt({3 * (SP * j + SP - 1 - s)})")
            f = FR + (s % 4) * 8
            a(f"v_mfma_f32_32x32x16_bf16 {vr(ACC, 16)}, {vr(f + 4, 4)}, {vr(f, 4)}, {vr(ACC, 16)}")
    STG = 131072
    a("s_lshl_b32 s32, s27, 5")
    a("v_add_u32 v12, s32, v3")
    a("v_mul_u32_u24 v12, 144, v12")
    a("v_lshl_add_u32 v12, v4, 4, v12")
    a("s_lshl_b32 s32, s28, 6")
    a(f"s_add_u32 s32, s32, {STG}")
    a("v_add_u32 v12, s32, v12")
    a("v_lshrrev_b32 v13, 3, v1")
    a("s_lshl_b32 s32, s26, 4")
    a("v_add_u32 v13, s32, v13")
    a("v_and_b32 v14, 7, v1")
    a("v_lshlrev_b32 v15, 10, v13")
    a("v_lshl_add_u32 v15, v14, 4, v15")
    a("v_mul_u32_u24 v13, 144, v13")
    a("v_lshl_add_u32 v13, v14, 4, v13")
    a(f"v_add_u32 v13, {STG}, v13")
    a("s_lshl_b32 s31, s24, 16")
    a("s_lshl_b32 s32, s25, 7")
    a("s_add_u32 s31, s31, s32")
    T = 32
    for u in range(2):
        for q in range(4):
            a(f"v_cvt_pk_bf16_f32 v{T + 4 * u + q}, v{ACC + 8 * u + 2 * q}, v{ACC + 8 * u + 2 * q + 1}")
        a(f"ds_write_b128 v12, {vr(T + 4 * u, 4)} offset:{u * 32}")
    a("s_waitcnt lgkmcnt(0)")
    a("s_barrier")
    for u in range(2):
        a(f"ds_read_b128 {vr(T + 8 + 4 * u, 4)}, v13 offset:{u * 8 * 144}")
    for u in range(2):
        a(f"s_waitcnt lgkmcnt({1 - u})")
        a(f"buffer_store_dwordx4 {vr(T + 8 + 4 * u, 4)}, v15, s[{SO}:{SO + 3}], s31 offen offset:0 {STF3}" if u == 0 else
          f"buffer_store_dwordx4 {vr(T + 8 + 4 * u, 4)}, v16, s[{SO}:{SO + 3}], s31 offen {STF3}")
        if u == 0:
            a("v_add_u32 v16, 8192, v15")
    a.diag_end(2, 26, "K3_END")
    a("s_endpgm")
    a.label("K3_LOADER")
    a("s_sub_u32 s26, s26, 4")
    a("v_lshlrev_b32 v5, 4, v1")
    a("v_lshrrev_b32 v6, 4, v1")
    a("v_and_b32 v6, 1, v6")
    a("v_lshlrev_b32 v6, 2, v6")
    a("v_and_b32 v7, 7, v1")
    a("v_xor_b32 v6, v6, v7")
    a("v_lshlrev_b32 v6, 4, v6")
    a("v_lshrrev_b32 v7, 3, v1")
    a("v_lshl_add_u32 v6, v7, 10, v6")
    a("s_and_b32 s27, s26, 1")
    a("s_lshr_b32 s28, s26, 1")
    a("s_lshl_b32 s33, s24, 16")
    a("s_lshl_b32 s34, s27, 15")
    a("s_add_u32 s33, s33, s34")
    a("s_lshl_b32 s35, s28, 11")
    a("s_add_u32 s33, s33, s35")
    a(f"s_add_u32 s33, s33, {WS_O}")
    a("s_add_u32 s34, s34, s35")
    a("s_lshl_b32 s35, s26, 14")
    a("s_lshl_b32 s36, s25, 7")
    a("s_add_u32 s35, s35, s36")
    a("s_lshl_b32 s36, s26, 11")
    a("s_add_u32 s36, s36, 0x10000")
    a("s_waitcnt lgkmcnt(0)")
    srd(a, SW, 4, 512 * 512 * 2)
    srd(a, SWS, 8, WS_BYTES)
    a("s_lshr_b32 s39, s2, 3")

    def dma3(j):
        a(f"s_add_u32 s40, s39, {j}")
        a("s_and_b32 s40, s40, 7")
        a("s_lshl_b32 s41, s40, 12")
        a("s_add_u32 s41, s41, s33")
        a("s_lshl_b32 s42, s40, 16")
        a("s_add_u32 s42, s42, s35")
        for i in range(2):
            a(f"s_add_u32 s37, s41, {i * 1024}")
            a(f"s_add_u32 m0, s34, {j * 4096 + i * 1024}")
            a("s_nop 0")
            a(f"buffer_load_dwordx4 v5, s[{SWS}:{SWS + 3}], s37 offen lds")
        for i in range(2):
            a(f"s_add_u32 s37, s42, {i * 8192}")
            a(f"s_add_u32 m0, s36, {j * 8192 + i * 1024}")
            a("s_nop 0")
            a(f"buffer_load_dwordx4 v6, s[{SW}:{SW + 3}], s37 offen lds")

    LA3 = int(os.environ.get("LA3", "4"))
    for j in range(LA3):
        dma3(j)
    for j in range(NPH):
        issued = min(j + LA3, NPH)
        a(f"s_waitcnt vmcnt({4 * (issued - j - 1)})")
        a("s_barrier")
        if j + LA3 < NPH:
            dma3(j + LA3)
    a.label("K3_END")
    a("s_endpgm")
    return name, 64, 48


def main():
    a = Asm()
    hdr = open("standalone__sliding_block__prompt.s.ref").read().split("\n")
    for line in hdr:
        if line.startswith("; @launch") or not line.startswith(";"):
            break
        a.raw(line)
    a.raw("; @launch kernel=qkv_kernel grid=(256,1,1) block=(512,1,1) lds=131072")
    a.raw("; @launch kernel=attn_kernel grid=(256,1,1) block=(512,1,1) lds=33280")
    a.raw("; @launch kernel=oproj_kernel grid=(256,1,1) block=(512,1,1) lds=140288")
    a.raw('.amdgcn_target "amdgcn-amd-amdhsa--gfx950"')
    a.raw(".text")
    ks = [gen_k1(a), gen_k2(a), gen_k3(a)]
    a.raw('.section .rodata,"a"')
    for name, v, s in ks:
        kd(a, name, v, s)
    txt = a.text()
    if int(os.environ.get("LOADER_FIRST", "1")):
        for k, end in (("K1", "K1_END"), ("K3", "K3_END")):
            br = f"    s_cmp_ge_u32 s26, 4\n    s_cbranch_scc1 {k}_LOADER\n"
            i0 = txt.index(br)
            i1 = txt.index(f"{k}_LOADER:\n")
            i2 = txt.index(f"{end}:\n")
            comp = txt[i0 + len(br):i1]
            load = txt[i1 + len(f"{k}_LOADER:\n"):i2]
            txt = (txt[:i0] + f"    s_cmp_lt_u32 s26, 4\n    s_cbranch_scc1 {k}_COMPUTE\n" + load + "    s_endpgm\n"
                   + f"{k}_COMPUTE:\n" + comp + txt[i2:])
    open(OUT, "w").write(txt)


main()
```

```python
import sys

OUT = sys.argv[1] if len(sys.argv) > 1 else "standalone__sliding_block__prompt.s"

MB = 1 << 20
WS_Q, WS_K, WS_V, WS_O = 0, 65536, 131072, 6 * MB
HS = 196608
WS_BYTES = 8 * MB


import os
DIAG = int(os.environ.get("DIAG", "0"))
STF = os.environ.get("STF", "sc1")
STF3 = os.environ.get("STF3", "sc1")
TOUCH = int(os.environ.get("TOUCH", "1"))


class Asm:
    def __init__(self):
        self.lines = []
        self.nst = 0

    def stamp(self):
        if DIAG:
            i = self.nst
            self.nst += 1
            self(f"s_memtime s[{82 + 2 * i}:{83 + 2 * i}]")

    def diag_begin(self):
        if DIAG:
            self.nst = 0
            self("s_memrealtime s[100:101]")
            self.stamp()

    def diag_end(self, kidx, wave_sreg, lab):
        if not DIAG:
            return
        self.stamp()
        self("s_waitcnt vmcnt(0) lgkmcnt(0)")
        self.stamp()
        self("s_memrealtime s[98:99]")
        self("s_load_dwordx2 s[76:77], s[0:1], 40")
        self("s_waitcnt lgkmcnt(0)")
        self(f"s_cmp_lg_u32 s{wave_sreg}, 0")
        self(f"s_cbranch_scc1 {lab}")
        self("s_and_b32 s77, s77, 0xffff")
        self("s_mov_b32 s78, 0x2000000")
        self("s_mov_b32 s79, 0x00020000")
        self("s_lshl_b32 s80, s2, 7")
        self(f"s_add_u32 s80, s80, {16 * MB + kidx * 65536}")
        self("v_mov_b32 v1, 0")
        self("v_mov_b32 v2, s100")
        self("buffer_store_dword v2, v1, s[76:79], s80 offen")
        self("v_mov_b32 v2, s98")
        self("buffer_store_dword v2, v1, s[76:79], s80 offen offset:4")
        for i in range(self.nst):
            self(f"s_sub_u32 s81, s{82 + 2 * i}, s82")
            self("v_mov_b32 v2, s81")
            self(f"buffer_store_dword v2, v1, s[76:79], s80 offen offset:{8 + 4 * i}")

    def __call__(self, s):
        self.lines.append("    " + s)

    def label(self, l):
        self.lines.append(l + ":")

    def raw(self, s):
        self.lines.append(s)

    def text(self):
        return "\n".join(self.lines) + "\n"


def vr(base, n):
    return f"v[{base}:{base + n - 1}]"


def srd(a, d, ptr_lo, nbytes):
    a(f"s_mov_b32 s{d}, s{ptr_lo}")
    a(f"s_and_b32 s{d + 1}, s{ptr_lo + 1}, 0xffff")
    a(f"s_mov_b32 s{d + 2}, {nbytes:#x}")
    a(f"s_mov_b32 s{d + 3}, 0x00020000")


def kernel_head(a, name):
    a.raw(f".globl {name}")
    a.raw(".p2align 8")
    a.raw(f".type {name},@function")
    a.label(name)


def kd(a, name, vgpr, sgpr):
    acc = (vgpr + 3) // 4 * 4
    a.raw(".p2align 6")
    a.raw(f".amdhsa_kernel {name}")
    a.raw(f"  .amdhsa_next_free_vgpr {vgpr}")
    a.raw(f"  .amdhsa_next_free_sgpr {102 if DIAG else sgpr}")
    a.raw(f"  .amdhsa_accum_offset {acc}")
    a.raw("  .amdhsa_group_segment_fixed_size 0")
    a.raw("  .amdhsa_kernarg_size 48")
    a.raw("  .amdhsa_user_sgpr_count 2")
    a.raw("  .amdhsa_user_sgpr_kernarg_segment_ptr 1")
    a.raw("  .amdhsa_system_sgpr_workgroup_id_x 1")
    a.raw(".end_amdhsa_kernel")


def gen_k1(a):
    name = "qkv_kernel"
    kernel_head(a, name)
    SX, SW, SWS = 12, 16, 20
    a("s_cmp_ge_u32 s2, 256")
    a("s_cbranch_scc1 K1_END")
    a.diag_begin()
    a("s_load_dwordx4 s[4:7], s[0:1], 0")
    a("s_load_dwordx2 s[8:9], s[0:1], 40")
    a("v_lshrrev_b32 v2, 6, v0")
    a("v_and_b32 v1, 63, v0")
    MAP1 = os.environ.get("MAP1", "2x4")
    if MAP1 == "1x8":
        a("s_and_b32 s24, s2, 7")
        a("s_lshr_b32 s25, s2, 3")
        a("v_readfirstlane_b32 s26, v2")
        a("s_nop 0")
    elif MAP1 == "4x2":
        a("s_and_b32 s24, s2, 1")
        a("s_lshl_b32 s24, s24, 2")
        a("s_bfe_u32 s25, s2, 0x20003")
        a("s_add_u32 s24, s24, s25")
        a("v_readfirstlane_b32 s26, v2")
        a("s_bfe_u32 s25, s2, 0x20001")
        a("s_lshl_b32 s25, s25, 3")
        a("s_lshr_b32 s27, s2, 5")
        a("s_add_u32 s25, s25, s27")
    elif MAP1 == "2x4":
        a("s_and_b32 s24, s2, 3")
        a("s_lshl_b32 s24, s24, 1")
        a("s_bfe_u32 s25, s2, 0x10003")
        a("s_add_u32 s24, s24, s25")
        a("v_readfirstlane_b32 s26, v2")
        a("s_bfe_u32 s25, s2, 0x10002")
        a("s_lshl_b32 s25, s25, 4")
        a("s_lshr_b32 s27, s2, 4")
        a("s_add_u32 s25, s25, s27")
    a("s_cmp_ge_u32 s26, 4")
    a("s_cbranch_scc1 K1_LOADER")
    a("v_and_b32 v3, 31, v1")
    a("v_lshrrev_b32 v4, 5, v1")
    a("s_and_b32 s27, s26, 1")
    a("s_lshr_b32 s28, s26, 1")
    a("s_lshl_b32 s29, s27, 5")
    a("v_add_u32 v9, s29, v3")
    a("v_lshrrev_b32 v10, 1, v9")
    a("v_and_b32 v10, 7, v10")
    a("v_lshlrev_b32 v9, 7, v9")
    for s in range(4):
        a(f"v_add_u32 v11, {2 * s}, v4")
        a("v_xor_b32 v11, v11, v10")
        a(f"v_lshl_add_u32 v{12 + s}, v11, 4, v9")
    a("v_lshrrev_b32 v9, 2, v1")
    a("v_and_b32 v9, 3, v9")
    a("v_lshrrev_b32 v10, 1, v9")
    a("v_xor_b32 v10, s28, v10")
    a("v_lshlrev_b32 v10, 6, v10")
    a("v_lshl_add_u32 v9, v4, 3, v9")
    a("v_lshl_add_u32 v10, v9, 7, v10")
    a("v_lshrrev_b32 v9, 4, v1")
    a("v_and_b32 v9, 1, v9")
    a("v_lshl_add_u32 v10, v9, 5, v10")
    a("v_and_b32 v9, 3, v1")
    a("v_lshl_add_u32 v10, v9, 3, v10")
    a("v_add_u32 v10, 0x8000, v10")
    a("v_add_u32 v11, 0xc000, v10")
    a("v_lshlrev_b32 v5, 5, v3")
    a("v_lshl_add_u32 v5, v4, 4, v5")
    a("v_and_b32 v6, 15, v1")
    a("v_lshlrev_b32 v6, 5, v6")
    a("v_lshl_add_u32 v6, v4, 4, v6")
    a("v_lshrrev_b32 v9, 4, v3")
    a(f"v_mul_u32_u24 v9, {HS}, v9")
    a("v_add_u32 v6, v9, v6")
    ACC = 16
    FR = 64
    for r in range(48):
        a(f"v_mov_b32 v{ACC + r}, 0")
    a(f"s_mul_i32 s31, s24, {4 * HS}")
    a(f"s_mul_i32 s32, s28, {2 * HS}")
    a("s_add_u32 s31, s31, s32")
    a("s_lshl_b32 s32, s25, 11")
    a("s_add_u32 s31, s31, s32")
    a("s_lshl_b32 s32, s27, 10")
    a("s_add_u32 s31, s31, s32")
    a(f"s_add_u32 s32, s31, {HS}")
    a(f"s_add_u32 s33, s31, {WS_K}")
    a(f"s_add_u32 s34, s33, {HS}")
    a(f"s_add_u32 s35, s31, {WS_V}")
    a("s_waitcnt lgkmcnt(0)")
    srd(a, SWS, 8, WS_BYTES)
    if TOUCH:
        for so in (31, 34):
            a(f"buffer_load_dword v96, v5, s[{SWS}:{SWS + 3}], s{so} offen")
        a(f"buffer_load_dword v96, v6, s[{SWS}:{SWS + 3}], s35 offen")
        a("s_lshl_b32 s36, s2, 13")
        a(f"s_add_u32 s36, s36, {WS_O}")
        a(f"buffer_load_dword v96, v5, s[{SWS}:{SWS + 3}], s36 offen")

    def reads(c, s):
        b = c % 4
        f = FR + ((4 * c + s) % 2) * 16
        a(f"ds_read_b128 {vr(f, 4)}, v{12 + s} offset:{b * 8192}")
        breg = 10 if b < 2 else 11
        boff = (b % 2) * 24576 + s * 2048
        for p in range(3):
            a(f"ds_read_b64_tr_b16 {vr(f + 4 + 4 * p, 2)}, v{breg} offset:{boff + p * 8192}")
            a(f"ds_read_b64_tr_b16 {vr(f + 6 + 4 * p, 2)}, v{breg} offset:{boff + p * 8192 + 512}")

    for c in range(8):
        a("s_barrier")
        if c in (0, 1, 4, 7):
            a.stamp()
        reads(c, 0)
        for s in range(4):
            if s + 1 < 4:
                reads(c, s + 1)
                a("s_waitcnt lgkmcnt(7)")
            else:
                a("s_waitcnt lgkmcnt(0)")
            f = FR + ((4 * c + s) % 2) * 16
            af = vr(f, 4)
            a(f"v_mfma_f32_32x32x16_bf16 {vr(ACC, 16)}, {vr(f + 4, 4)}, {af}, {vr(ACC, 16)}")
            a(f"v_mfma_f32_32x32x16_bf16 {vr(ACC + 16, 16)}, {vr(f + 8, 4)}, {af}, {vr(ACC + 16, 16)}")
            a(f"v_mfma_f32_32x32x16_bf16 {vr(ACC + 32, 16)}, {af}, {vr(f + 12, 4)}, {vr(ACC + 32, 16)}")
    a("s_nop 7")
    a("s_nop 3")
    T = 64
    for tile, soffs in ((0, (31, 32)), (1, (33, 34))):
        for hd in range(2):
            base = ACC + 16 * tile + 8 * hd
            t = T + 4 * (2 * tile + hd)
            for q in range(4):
                a(f"v_cvt_pk_bf16_f32 v{t + q}, v{base + 2 * q}, v{base + 2 * q + 1}")
            a(f"buffer_store_dwordx4 {vr(t, 4)}, v5, s[{SWS}:{SWS + 3}], s{soffs[hd]} offen {STF}")
    for u in range(2):
        base = ACC + 32 + 8 * u
        t = T + 16 + 4 * u
        for q in range(4):
            a(f"v_cvt_pk_bf16_f32 v{t + q}, v{base + 2 * q}, v{base + 2 * q + 1}")
        a(f"buffer_store_dwordx4 {vr(t, 4)}, v6, s[{SWS}:{SWS + 3}], s35 offen offset:{u * 512} {STF}")
    a.diag_end(0, 26, "K1_END")
    a("s_endpgm")
    a.label("K1_LOADER")
    a("s_sub_u32 s26, s26, 4")
    a("v_lshrrev_b32 v5, 3, v1")
    a("v_and_b32 v6, 7, v1")
    a("s_and_b32 s27, s26, 1")
    a("v_lshrrev_b32 v7, 4, v1")
    a("s_lshl_b32 s29, s27, 2")
    a("v_add_u32 v7, s29, v7")
    a("v_xor_b32 v7, v7, v6")
    a("v_lshlrev_b32 v7, 4, v7")
    a("v_lshl_add_u32 v7, v5, 10, v7")
    a("v_lshrrev_b32 v8, 4, v1")
    a("v_and_b32 v8, 1, v8")
    a("v_lshlrev_b32 v8, 2, v8")
    a("v_xor_b32 v8, v8, v6")
    a("v_lshlrev_b32 v8, 4, v8")
    a("v_mul_u32_u24 v9, 3072, v5")
    a("v_add_u32 v8, v8, v9")
    a("s_lshl_b32 s29, s25, 16")
    a("s_lshl_b32 s30, s26, 13")
    a("s_add_u32 s29, s29, s30")
    a("s_lshl_b32 s30, s26, 10")
    a("s_mul_i32 s31, s26, 49152")
    a("s_lshl_b32 s32, s24, 7")
    a("s_add_u32 s31, s31, s32")
    a("s_lshl_b32 s32, s26, 11")
    a("s_add_u32 s32, s32, 0x8000")
    a("s_waitcnt lgkmcnt(0)")
    srd(a, SX, 4, 2048 * 512 * 2)
    srd(a, SW, 6, 512 * 1536 * 2)

    a("s_lshr_b32 s39, s2, 3")

    def dma(c):
        b = c % 4
        a(f"s_add_u32 s36, s39, {c}")
        a("s_and_b32 s36, s36, 7")
        a("s_lshl_b32 s37, s36, 7")
        a("s_add_u32 s37, s37, s29")
        a("s_mul_i32 s38, s36, 196608")
        a("s_add_u32 s38, s38, s31")
        for i2 in range(2):
            a(f"s_add_u32 s33, s37, {i2 * 32768}")
            a(f"s_add_u32 m0, s30, {b * 8192 + i2 * 4096}")
            a("s_nop 0")
            a(f"buffer_load_dwordx4 v7, s[{SX}:{SX + 3}], s33 offen lds")
        for p in range(3):
            for i2 in range(2):
                a(f"s_add_u32 s33, s38, {i2 * 8 * 3072 + p * 1024}")
                a(f"s_add_u32 m0, s32, {b * 24576 + p * 8192 + i2 * 1024}")
                a("s_nop 0")
                a(f"buffer_load_dwordx4 v8, s[{SW}:{SW + 3}], s33 offen lds")

    dma(0)
    dma(1)
    issued = 2
    for c in range(8):
        a(f"s_waitcnt vmcnt({8 * (issued - c - 1)})")
        a("s_barrier")
        while issued < min(c + 4, 8):
            dma(issued)
            issued += 1
    a.label("K1_END")
    a("s_endpgm")
    return name, 100, 40


def gen_k2(a):
    name = "attn_kernel"
    kernel_head(a, name)
    SWS = 12
    MK = 16
    a("s_cmp_ge_u32 s2, 256")
    a("s_cbranch_scc1 K2_END")
    a.diag_begin()
    a("s_load_dwordx2 s[8:9], s[0:1], 40")
    a("s_load_dwordx2 s[10:11], s[0:1], 16")
    a("v_lshrrev_b32 v2, 6, v0")
    a("v_and_b32 v1, 63, v0")
    a("s_and_b32 s50, s2, 7")
    a("s_lshl_b32 s50, s50, 2")
    a("s_bfe_u32 s51, s2, 0x20003")
    a("s_add_u32 s50, s50, s51")
    a("v_readfirstlane_b32 s52, v2")
    a("s_lshr_b32 s51, s2, 5")
    a("v_and_b32 v3, 31, v1")
    a("v_lshrrev_b32 v4, 5, v1")
    a("v_lshlrev_b32 v5, 5, v3")
    a("v_lshl_add_u32 v5, v4, 4, v5")
    a("v_lshlrev_b32 v2, 4, v1")
    a(f"s_mul_i32 s53, s50, {HS}")
    a("s_lshl_b32 s56, s51, 3")
    a("s_add_u32 s51, s56, s52")
    a("s_lshl_b32 s54, s51, 10")
    a("s_add_u32 s54, s54, s53")
    a("s_lshl_b32 s57, s52, 1")
    a("s_add_u32 s58, s56, s57")
    a("s_sub_i32 s58, s58, 8")
    a("s_add_i32 s59, s58, 1")
    a("s_max_i32 s58, s58, 0")
    a("s_max_i32 s59, s59, 0")
    a("s_lshl_b32 s58, s58, 10")
    a("s_lshl_b32 s59, s59, 10")
    a("s_add_u32 s58, s58, s53")
    a("s_add_u32 s59, s59, s53")
    a("s_lshl_b32 s57, s57, 10")
    a("s_lshl_b32 s60, s52, 10")
    a("v_add_u32 v6, s60, v5")
    a("s_waitcnt lgkmcnt(0)")
    srd(a, SWS, 8, WS_BYTES)
    QF, MPK, AC, OA, BIAS, PK = 8, 12, 20, 36, 52, 68
    SBUF = [132, 148, 164]
    KF = 180
    PA, PBb, PC = 216, 224, 232
    for k, (sg, ws, lo) in enumerate(((58, WS_K, 0), (59, WS_K, 1024), (58, WS_V, 16384), (59, WS_V, 17408))):
        a(f"s_add_u32 s61, s{sg}, {ws}")
        a(f"s_add_u32 m0, s57, {lo}")
        a("s_nop 0")
        a(f"buffer_load_dwordx4 v2, s[{SWS}:{SWS + 3}], s61 offen lds")
        if k == 1:
            a(f"buffer_load_dwordx4 {vr(QF, 4)}, v5, s[{SWS}:{SWS + 3}], s54 offen")
    a("s_lshl_b32 s55, s51, 5")
    a("s_add_u32 s55, s55, s50")
    a("s_lshl_b32 s55, s55, 10")
    a(f"s_add_u32 s55, s55, {WS_O}")
    if TOUCH:
        a(f"buffer_load_dword v251, v5, s[{SWS}:{SWS + 3}], s55 offen")
    srd(a, 64, 10, 512 * 512 * 2)
    a("s_lshr_b32 s68, s2, 3")
    a("s_lshl_b32 s68, s68, 4")
    a("s_lshl_b32 s69, s52, 1")
    a("s_add_u32 s68, s68, s69")
    a("s_lshl_b32 s68, s68, 10")
    a("s_and_b32 s69, s2, 1")
    a("s_lshl_b32 s69, s69, 9")
    a("s_add_u32 s68, s68, s69")
    a("v_lshlrev_b32 v7, 4, v3")
    a("v_lshl_add_u32 v7, v4, 10, v7")
    a("buffer_load_dwordx4 v[252:255], v7, s[64:67], s68 offen")
    a("v_lshrrev_b32 v7, 3, v3")
    a("v_lshlrev_b32 v7, 1, v7")
    a("v_bfe_u32 v2, v3, 1, 1")
    a("v_add_u32 v7, v7, v2")
    a("v_bfe_u32 v2, v3, 2, 1")
    a("v_xor_b32 v2, v2, v4")
    a("v_lshl_add_u32 v7, v2, 6, v7")
    a("v_and_b32 v2, 1, v3")
    a("v_lshlrev_b32 v2, 4, v2")
    a(f"v_mov_b32 v{BIAS}, 0x3eb9")
    a(f"v_mov_b32 v{BIAS + 1}, 0xba2c")
    a(f"v_lshlrev_b32 v{BIAS}, v2, v{BIAS}")
    a(f"v_lshlrev_b32 v{BIAS + 1}, v2, v{BIAS + 1}")
    for t in range(8):
        a(f"v_cmp_eq_u32 s[{MK + 2 * t}:{MK + 2 * t + 1}], {t}, v7")
    a("s_nop 1")
    for t in range(8):
        a(f"v_cndmask_b32 v{AC + t}, 0, v{BIAS}, s[{MK + 2 * t}:{MK + 2 * t + 1}]")
        a(f"v_cndmask_b32 v{AC + 8 + t}, 0, v{BIAS + 1}, s[{MK + 2 * t}:{MK + 2 * t + 1}]")
    a("v_lshlrev_b32 v7, 2, v4")
    a("v_sub_u32 v7, v3, v7")
    for r in range(16):
        c = 8 * (r // 4) + (r % 4)
        a(f"v_cmp_le_i32 s[{MK + 2 * r}:{MK + 2 * r + 1}], {c}, v7")
    a("v_mov_b32 v3, 0xffff")
    a("v_mov_b32 v7, 0xffff0000")
    a("s_nop 1")
    for j in range(8):
        a(f"v_cndmask_b32 v{MPK + j}, 0, v3, s[{MK + 4 * j}:{MK + 4 * j + 1}]")
        a(f"v_cndmask_b32 v{PA + j}, 0, v7, s[{MK + 4 * j + 2}:{MK + 4 * j + 3}]")
    for j in range(8):
        a(f"v_or_b32 v{MPK + j}, v{MPK + j}, v{PA + j}")
    for r in range(16):
        a(f"v_mov_b32 v{OA + r}, 0")
    a("v_mov_b32 v3, 0xff800000")
    a("v_mov_b32 v7, 0xff800000")
    a("v_mov_b32 v4, 0x3f803f80")
    a.stamp()
    a(f"s_waitcnt vmcnt({3 + TOUCH})")
    a("s_barrier")
    a.stamp()
    korder = [0, 8, 1, 2, 3, 4, 5, 6, 7]
    for i in korder:
        a(f"ds_read_b128 {vr(KF + 4 * i, 4)}, v6 offset:{i * 1024}")

    def sbuf(i):
        if i == 0:
            return SBUF[0]
        if i == 8:
            return SBUF[1]
        return [SBUF[2], SBUF[0], SBUF[1]][(i - 1) % 3]

    def smfma(n):
        i = korder[n]
        return [f"s_waitcnt lgkmcnt({8 - n})",
                f"v_mfma_f32_32x32x16_bf16 {vr(sbuf(i), 16)}, {vr(KF + 4 * i, 4)}, {vr(QF, 4)}, 0"]

    vorder = [8, 0, 1, 2, 3, 4, 5, 6, 7]

    def vread(ns):
        o = ["s_mov_b32 exec_lo, 0xffff", "s_mov_b32 exec_hi, 0xffff"]
        for n in ns:
            i = vorder[n]
            b = KF + 8 * (n % 4)
            o += [f"ds_read_b128 {vr(b + 4 * u, 4)}, v6 offset:{16384 + i * 1024 + u * 512}" for u in range(2)]
        o.append("s_mov_b64 exec, -1")
        return o

    def emit_inter(valu, extra, start=1, step=None):
        n = len(extra)
        if step is None:
            step = max(1, (len(valu) - start) // max(n, 1))
        k = 0
        for idx, l in enumerate(valu):
            a(l)
            if k < n and idx >= start and (idx - start) % step == 0:
                for x in extra[k]:
                    a(x)
                k += 1
        while k < n:
            for x in extra[k]:
                a(x)
            k += 1

    def proc(src, slot):
        o = []
        for q in range(8):
            m = (3, 7)[q & 1]
            o.append(f"v_max3_f32 v{m}, v{m}, v{src + 2 * q}, v{src + 2 * q + 1}")
            o.append(f"v_cvt_pk_bf16_f32 v{PK + 8 * slot + q}, v{src + 2 * q}, v{src + 2 * q + 1}")
        return o

    for n in range(3):
        for l in smfma(n):
            a(l)
    a("s_nop 7")
    a("s_nop 1")
    a("s_cmp_ge_u32 s51, 8")
    a("s_cbranch_scc1 K2_HAVE0")
    for r in range(16):
        a(f"v_mov_b32 v{SBUF[0] + r}, 0xf14a0000")
    a.label("K2_HAVE0")
    for r in range(16):
        a(f"v_cndmask_b32 v{SBUF[1] + r}, v{SBUF[0] + r}, v{SBUF[1] + r}, s[{MK + 2 * r}:{MK + 2 * r + 1}]")
    for l in smfma(3):
        a(l)
    for l in proc(SBUF[1], 0):
        a(l)
    for i in range(1, 8):
        if i + 3 < 9:
            for l in smfma(i + 3):
                a(l)
        if i == 5:
            for r in range(16):
                a(f"v_mov_b32 v{KF + r}, v4")
            a(f"s_waitcnt vmcnt({1 + TOUCH})")
            a("s_barrier")
            for l in vread([0, 1]):
                a(l)
        if i == 6:
            for r in range(16):
                a(f"v_mov_b32 v{KF + 16 + r}, v4")
            for l in vread([2, 3]):
                a(l)
        a(f"s_cmp_ge_u32 s51, {8 - i}")
        a(f"s_cbranch_scc1 K2_T{i}_OK")
        for q in range(8):
            a(f"v_mov_b32 v{PK + 8 * i + q}, 0xf14af14a")
        a("s_nop 3")
        a(f"s_branch K2_T{i}_DONE")
        a.label(f"K2_T{i}_OK")
        for l in proc(sbuf(i), i):
            a(l)
        a.label(f"K2_T{i}_DONE")
    a.stamp()
    a("v_max_f32 v3, v3, v7")
    a("v_mov_b32 v7, v3")
    a("s_nop 1")
    a("v_permlane32_swap_b32 v3, v7")
    a("s_nop 1")
    a("v_max_f32 v3, v3, v7")
    a("v_cvt_pk_bf16_f32 v3, 0, v3")
    a("v_mul_f32 v3, 0xbeb8aa00, v3")
    for r in range(16):
        a(f"v_mov_b32 v{BIAS + r}, v3")
    DB = [SBUF[0], SBUF[1]]

    def scale(i):
        d = DB[i % 2]
        p = PK + 8 * i
        return [[f"v_mfma_f32_32x32x16_bf16 {vr(d, 16)}, {vr(AC, 4)}, {vr(p, 4)}, {vr(BIAS, 16)}"],
                [f"v_mfma_f32_32x32x16_bf16 {vr(d, 16)}, {vr(AC + 4, 4)}, {vr(p + 4, 4)}, {vr(d, 16)}"],
                [f"v_mfma_f32_32x32x16_bf16 {vr(d, 16)}, {vr(AC + 8, 4)}, {vr(p, 4)}, {vr(d, 16)}"],
                [f"v_mfma_f32_32x32x16_bf16 {vr(d, 16)}, {vr(AC + 12, 4)}, {vr(p + 4, 4)}, {vr(d, 16)}"]]

    def expo(i, pdst):
        d = DB[i % 2]
        o = [f"v_exp_f32 v{d + r}, v{d + r}" for r in range(16)]
        o.append("s_nop 0")
        o += [f"v_cvt_pk_bf16_f32 v{pdst + q}, v{d + 2 * q}, v{d + 2 * q + 1}" for q in range(8)]
        return o

    def pv(n, psrc):
        b = KF + 8 * (n % 4)
        return [[f"v_mfma_f32_32x32x16_bf16 {vr(OA, 16)}, {vr(b + 4 * u, 4)}, {vr(psrc + 4 * u, 4)}, {vr(OA, 16)}"] for u in range(2)]

    a("s_nop 1")
    for g in scale(0):
        a(g[0])
    a("s_nop 7")
    a("s_nop 3")
    pend = []
    for i in range(8):
        pdst = PA if i % 2 == 0 else PBb
        if i == 0:
            pdst = PA
        elif i == 1:
            pdst = PA
        else:
            pdst = PBb if i % 2 == 0 else PA
        val = expo(i, pdst)
        if i == 0:
            for q in range(8):
                val.append(f"v_and_b32 v{PBb + q}, v{PA + q}, v{MPK + q}")
                val.append(f"v_bfi_b32 v{PC + q}, v{MPK + q}, 0, v{PA + q}")
        extra = (scale(i + 1) if i + 1 < 8 else []) + pend
        emit_inter(val, extra, start=1, step=2 if len(extra) > 6 else 3)
        if i == 0:
            p0, p1 = pv(0, PBb), pv(1, PC)
            pend = [["s_waitcnt lgkmcnt(4)"] + p0[0], p0[1], p1[0], p1[1] + vread([4, 5])]
        else:
            n = i + 1
            issued = min(n + 3, 8)
            p0 = pv(n, pdst)
            pend = [[f"s_waitcnt lgkmcnt({2 * (issued - n)})"] + p0[0], p0[1] + (vread([n + 4]) if n + 4 <= 8 else [])]
    a("s_nop 1")
    for g in pend:
        for l in g:
            a(l)
    a("s_nop 7")
    a("s_nop 7")
    a(f"v_rcp_f32 v7, v{OA + 8}")
    a("s_nop 0")
    for r in range(8):
        a(f"v_mul_f32 v{OA + r}, v{OA + r}, v7")
    T = SBUF[2]
    for q in range(4):
        a(f"v_cvt_pk_bf16_f32 v{T + q}, v{OA + 2 * q}, v{OA + 2 * q + 1}")
    a(f"buffer_store_dwordx4 {vr(T, 4)}, v5, s[{SWS}:{SWS + 3}], s55 offen {STF}")
    a("s_sub_u32 s63, s52, 7")
    a.diag_end(1, 52 if DIAG != 2 else 63, "K2_END")
    a.label("K2_END")
    a("s_endpgm")
    return name, 256, 80


def gen_k3(a):
    name = "oproj_kernel"
    kernel_head(a, name)
    SW, SWS, SO = 12, 16, 20
    a("s_cmp_ge_u32 s2, 256")
    a("s_cbranch_scc1 K3_END")
    a.diag_begin()
    a("s_load_dwordx4 s[4:7], s[0:1], 16")
    a("s_load_dwordx2 s[8:9], s[0:1], 40")
    a("v_lshrrev_b32 v2, 6, v0")
    a("v_and_b32 v1, 63, v0")
    a("s_and_b32 s25, s2, 1")
    a("s_lshl_b32 s25, s25, 2")
    a("s_bfe_u32 s24, s2, 0x20003")
    a("s_add_u32 s25, s25, s24")
    a("v_readfirstlane_b32 s26, v2")
    a("s_bfe_u32 s24, s2, 0x20001")
    a("s_lshl_b32 s24, s24, 3")
    a("s_lshr_b32 s27, s2, 5")
    a("s_add_u32 s24, s24, s27")
    a("s_cmp_ge_u32 s26, 4")
    a("s_cbranch_scc1 K3_LOADER")
    a("v_and_b32 v3, 31, v1")
    a("v_lshrrev_b32 v4, 5, v1")
    a("s_and_b32 s27, s26, 1")
    a("s_lshr_b32 s28, s26, 1")
    a("v_lshlrev_b32 v11, 5, v3")
    a("v_lshl_add_u32 v11, v4, 4, v11")
    a("s_lshl_b32 s29, s27, 15")
    a("v_add_u32 v11, s29, v11")
    a("v_lshrrev_b32 v8, 2, v1")
    a("v_and_b32 v8, 3, v8")
    a("v_lshrrev_b32 v9, 1, v8")
    a("v_xor_b32 v9, s28, v9")
    a("v_lshlrev_b32 v9, 6, v9")
    a("v_lshl_add_u32 v8, v4, 2, v8")
    a("v_lshl_add_u32 v8, v8, 7, v9")
    a("v_lshrrev_b32 v9, 4, v1")
    a("v_and_b32 v9, 1, v9")
    a("v_lshl_add_u32 v8, v9, 5, v8")
    a("v_and_b32 v9, 1, v1")
    a("v_lshl_add_u32 v8, v9, 4, v8")
    a("v_lshrrev_b32 v9, 1, v1")
    a("v_and_b32 v9, 1, v9")
    a("v_lshl_add_u32 v8, v9, 3, v8")
    a("v_add_u32 v8, 0x10000, v8")
    a("v_lshlrev_b32 v10, 10, v3")
    a("v_lshl_add_u32 v10, v4, 4, v10")
    a("s_lshl_b32 s31, s24, 16")
    a("s_lshl_b32 s32, s27, 15")
    a("s_add_u32 s31, s31, s32")
    a("s_lshl_b32 s32, s25, 7")
    a("s_add_u32 s31, s31, s32")
    a("s_lshl_b32 s32, s28, 6")
    a("s_add_u32 s31, s31, s32")
    ACC = 16
    FR = 32
    for r in range(16):
        a(f"v_mov_b32 v{ACC + r}, 0")
    a("s_waitcnt lgkmcnt(0)")
    srd(a, SO, 6, 2048 * 512 * 2)
    if TOUCH:
        a(f"buffer_load_dword v17, v10, s[{SO}:{SO + 3}], s31 offen")
        a("s_waitcnt vmcnt(0)")
        a("v_mov_b32 v17, 0")

    def reads(s):
        f = FR + (s % 4) * 8
        a(f"ds_read_b128 {vr(f, 4)}, v11 offset:{s * 1024}")
        a(f"ds_read_b64_tr_b16 {vr(f + 4, 2)}, v8 offset:{s * 2048}")
        a(f"ds_read_b64_tr_b16 {vr(f + 6, 2)}, v8 offset:{s * 2048 + 1024}")

    NPH = 8
    SP = 32 // NPH
    for j in range(NPH):
        a("s_barrier")
        if j in (0, NPH - 1):
            a.stamp()
        pre = min(3, SP)
        for s in range(SP * j, SP * j + pre):
            reads(s)
        for s in range(SP * j, SP * j + SP):
            if s + 3 < SP * j + SP:
                reads(s + 3)
                a("s_waitcnt lgkmcnt(9)")
            else:
                a(f"s_waitcnt lgkmcnt({3 * (SP * j + SP - 1 - s)})")
            f = FR + (s % 4) * 8
            a(f"v_mfma_f32_32x32x16_bf16 {vr(ACC, 16)}, {vr(f + 4, 4)}, {vr(f, 4)}, {vr(ACC, 16)}")
    STG = 131072
    a("s_lshl_b32 s32, s27, 5")
    a("v_add_u32 v12, s32, v3")
    a("v_mul_u32_u24 v12, 144, v12")
    a("v_lshl_add_u32 v12, v4, 4, v12")
    a("s_lshl_b32 s32, s28, 6")
    a(f"s_add_u32 s32, s32, {STG}")
    a("v_add_u32 v12, s32, v12")
    a("v_lshrrev_b32 v13, 3, v1")
    a("s_lshl_b32 s32, s26, 4")
    a("v_add_u32 v13, s32, v13")
    a("v_and_b32 v14, 7, v1")
    a("v_lshlrev_b32 v15, 10, v13")
    a("v_lshl_add_u32 v15, v14, 4, v15")
    a("v_mul_u32_u24 v13, 144, v13")
    a("v_lshl_add_u32 v13, v14, 4, v13")
    a(f"v_add_u32 v13, {STG}, v13")
    a("s_lshl_b32 s31, s24, 16")
    a("s_lshl_b32 s32, s25, 7")
    a("s_add_u32 s31, s31, s32")
    T = 32
    for u in range(2):
        for q in range(4):
            a(f"v_cvt_pk_bf16_f32 v{T + 4 * u + q}, v{ACC + 8 * u + 2 * q}, v{ACC + 8 * u + 2 * q + 1}")
        a(f"ds_write_b128 v12, {vr(T + 4 * u, 4)} offset:{u * 32}")
    a("s_waitcnt lgkmcnt(0)")
    a("s_barrier")
    for u in range(2):
        a(f"ds_read_b128 {vr(T + 8 + 4 * u, 4)}, v13 offset:{u * 8 * 144}")
    for u in range(2):
        a(f"s_waitcnt lgkmcnt({1 - u})")
        a(f"buffer_store_dwordx4 {vr(T + 8 + 4 * u, 4)}, v15, s[{SO}:{SO + 3}], s31 offen offset:0 {STF3}" if u == 0 else
          f"buffer_store_dwordx4 {vr(T + 8 + 4 * u, 4)}, v16, s[{SO}:{SO + 3}], s31 offen {STF3}")
        if u == 0:
            a("v_add_u32 v16, 8192, v15")
    a.diag_end(2, 26, "K3_END")
    a("s_endpgm")
    a.label("K3_LOADER")
    a("s_sub_u32 s26, s26, 4")
    a("v_lshlrev_b32 v5, 4, v1")
    a("v_lshrrev_b32 v6, 4, v1")
    a("v_and_b32 v6, 1, v6")
    a("v_lshlrev_b32 v6, 2, v6")
    a("v_and_b32 v7, 7, v1")
    a("v_xor_b32 v6, v6, v7")
    a("v_lshlrev_b32 v6, 4, v6")
    a("v_lshrrev_b32 v7, 3, v1")
    a("v_lshl_add_u32 v6, v7, 10, v6")
    a("s_and_b32 s27, s26, 1")
    a("s_lshr_b32 s28, s26, 1")
    a("s_lshl_b32 s33, s24, 16")
    a("s_lshl_b32 s34, s27, 15")
    a("s_add_u32 s33, s33, s34")
    a("s_lshl_b32 s35, s28, 11")
    a("s_add_u32 s33, s33, s35")
    a(f"s_add_u32 s33, s33, {WS_O}")
    a("s_add_u32 s34, s34, s35")
    a("s_lshl_b32 s35, s26, 14")
    a("s_lshl_b32 s36, s25, 7")
    a("s_add_u32 s35, s35, s36")
    a("s_lshl_b32 s36, s26, 11")
    a("s_add_u32 s36, s36, 0x10000")
    a("s_waitcnt lgkmcnt(0)")
    srd(a, SW, 4, 512 * 512 * 2)
    srd(a, SWS, 8, WS_BYTES)
    a("s_lshr_b32 s39, s2, 3")

    def dma3(j):
        a(f"s_add_u32 s40, s39, {j}")
        a("s_and_b32 s40, s40, 7")
        a("s_lshl_b32 s41, s40, 12")
        a("s_add_u32 s41, s41, s33")
        a("s_lshl_b32 s42, s40, 16")
        a("s_add_u32 s42, s42, s35")
        for i in range(2):
            a(f"s_add_u32 s37, s41, {i * 1024}")
            a(f"s_add_u32 m0, s34, {j * 4096 + i * 1024}")
            a("s_nop 0")
            a(f"buffer_load_dwordx4 v5, s[{SWS}:{SWS + 3}], s37 offen lds")
        for i in range(2):
            a(f"s_add_u32 s37, s42, {i * 8192}")
            a(f"s_add_u32 m0, s36, {j * 8192 + i * 1024}")
            a("s_nop 0")
            a(f"buffer_load_dwordx4 v6, s[{SW}:{SW + 3}], s37 offen lds")

    LA3 = int(os.environ.get("LA3", "4"))
    for j in range(LA3):
        dma3(j)
    for j in range(NPH):
        issued = min(j + LA3, NPH)
        a(f"s_waitcnt vmcnt({4 * (issued - j - 1)})")
        a("s_barrier")
        if j + LA3 < NPH:
            dma3(j + LA3)
    a.label("K3_END")
    a("s_endpgm")
    return name, 64, 48


def main():
    a = Asm()
    hdr = open("standalone__sliding_block__prompt.s.ref").read().split("\n")
    for line in hdr:
        if line.startswith("; @launch") or not line.startswith(";"):
            break
        a.raw(line)
    a.raw("; @launch kernel=qkv_kernel grid=(256,1,1) block=(512,1,1) lds=131072")
    a.raw("; @launch kernel=attn_kernel grid=(256,1,1) block=(512,1,1) lds=33280")
    a.raw("; @launch kernel=oproj_kernel grid=(256,1,1) block=(512,1,1) lds=140288")
    a.raw('.amdgcn_target "amdgcn-amd-amdhsa--gfx950"')
    a.raw(".text")
    ks = [gen_k1(a), gen_k2(a), gen_k3(a)]
    a.raw('.section .rodata,"a"')
    for name, v, s in ks:
        kd(a, name, v, s)
    txt = a.text()
    if int(os.environ.get("LOADER_FIRST", "1")):
        for k, end in (("K1", "K1_END"), ("K3", "K3_END")):
            br = f"    s_cmp_ge_u32 s26, 4\n    s_cbranch_scc1 {k}_LOADER\n"
            i0 = txt.index(br)
            i1 = txt.index(f"{k}_LOADER:\n")
            i2 = txt.index(f"{end}:\n")
            comp = txt[i0 + len(br):i1]
            load = txt[i1 + len(f"{k}_LOADER:\n"):i2]
            txt = (txt[:i0] + f"    s_cmp_lt_u32 s26, 4\n    s_cbranch_scc1 {k}_COMPUTE\n" + load + "    s_endpgm\n"
                   + f"{k}_COMPUTE:\n" + comp + txt[i2:])
    open(OUT, "w").write(txt)


main()
```

```python
import sys

OUT = sys.argv[1] if len(sys.argv) > 1 else "standalone__sliding_block__prompt.s"

MB = 1 << 20
WS_Q, WS_K, WS_V, WS_O = 0, 65536, 131072, 6 * MB
HS = 196608
WS_BYTES = 8 * MB


import os
DIAG = int(os.environ.get("DIAG", "0"))
STF = os.environ.get("STF", "sc1")
STF3 = os.environ.get("STF3", "sc1")
TOUCH = int(os.environ.get("TOUCH", "0"))
WOPF = int(os.environ.get("WOPF", "1"))


class Asm:
    def __init__(self):
        self.lines = []
        self.nst = 0

    def stamp(self):
        if DIAG:
            i = self.nst
            self.nst += 1
            self(f"s_memtime s[{82 + 2 * i}:{83 + 2 * i}]")

    def diag_begin(self):
        if DIAG:
            self.nst = 0
            self("s_memrealtime s[100:101]")
            self.stamp()

    def diag_end(self, kidx, wave_sreg, lab):
        if not DIAG:
            return
        self.stamp()
        self("s_waitcnt vmcnt(0) lgkmcnt(0)")
        self.stamp()
        self("s_memrealtime s[98:99]")
        self("s_load_dwordx2 s[76:77], s[0:1], 40")
        self("s_waitcnt lgkmcnt(0)")
        self(f"s_cmp_lg_u32 s{wave_sreg}, 0")
        self(f"s_cbranch_scc1 {lab}")
        self("s_and_b32 s77, s77, 0xffff")
        self("s_mov_b32 s78, 0x2000000")
        self("s_mov_b32 s79, 0x00020000")
        self("s_lshl_b32 s80, s2, 7")
        self(f"s_add_u32 s80, s80, {16 * MB + kidx * 65536}")
        self("v_mov_b32 v1, 0")
        self("v_mov_b32 v2, s100")
        self("buffer_store_dword v2, v1, s[76:79], s80 offen")
        self("v_mov_b32 v2, s98")
        self("buffer_store_dword v2, v1, s[76:79], s80 offen offset:4")
        for i in range(self.nst):
            self(f"s_sub_u32 s81, s{82 + 2 * i}, s82")
            self("v_mov_b32 v2, s81")
            self(f"buffer_store_dword v2, v1, s[76:79], s80 offen offset:{8 + 4 * i}")

    def __call__(self, s):
        self.lines.append("    " + s)

    def label(self, l):
        self.lines.append(l + ":")

    def raw(self, s):
        self.lines.append(s)

    def text(self):
        return "\n".join(self.lines) + "\n"


def vr(base, n):
    return f"v[{base}:{base + n - 1}]"


def srd(a, d, ptr_lo, nbytes):
    a(f"s_mov_b32 s{d}, s{ptr_lo}")
    a(f"s_and_b32 s{d + 1}, s{ptr_lo + 1}, 0xffff")
    a(f"s_mov_b32 s{d + 2}, {nbytes:#x}")
    a(f"s_mov_b32 s{d + 3}, 0x00020000")


def kernel_head(a, name):
    a.raw(f".globl {name}")
    a.raw(".p2align 8")
    a.raw(f".type {name},@function")
    a.label(name)


def kd(a, name, vgpr, sgpr):
    acc = (vgpr + 3) // 4 * 4
    a.raw(".p2align 6")
    a.raw(f".amdhsa_kernel {name}")
    a.raw(f"  .amdhsa_next_free_vgpr {vgpr}")
    a.raw(f"  .amdhsa_next_free_sgpr {102 if DIAG else sgpr}")
    a.raw(f"  .amdhsa_accum_offset {acc}")
    a.raw("  .amdhsa_group_segment_fixed_size 0")
    a.raw("  .amdhsa_kernarg_size 48")
    a.raw("  .amdhsa_user_sgpr_count 2")
    a.raw("  .amdhsa_user_sgpr_kernarg_segment_ptr 1")
    a.raw("  .amdhsa_system_sgpr_workgroup_id_x 1")
    a.raw(".end_amdhsa_kernel")


def gen_k1(a):
    name = "qkv_kernel"
    kernel_head(a, name)
    SX, SW, SWS = 12, 16, 20
    a("s_cmp_ge_u32 s2, 256")
    a("s_cbranch_scc1 K1_END")
    a.diag_begin()
    a("s_load_dwordx4 s[4:7], s[0:1], 0")
    a("s_load_dwordx2 s[8:9], s[0:1], 40")
    a("v_lshrrev_b32 v2, 6, v0")
    a("v_and_b32 v1, 63, v0")
    MAP1 = os.environ.get("MAP1", "2x4")
    if MAP1 == "1x8":
        a("s_and_b32 s24, s2, 7")
        a("s_lshr_b32 s25, s2, 3")
        a("v_readfirstlane_b32 s26, v2")
        a("s_nop 0")
    elif MAP1 == "4x2":
        a("s_and_b32 s24, s2, 1")
        a("s_lshl_b32 s24, s24, 2")
        a("s_bfe_u32 s25, s2, 0x20003")
        a("s_add_u32 s24, s24, s25")
        a("v_readfirstlane_b32 s26, v2")
        a("s_bfe_u32 s25, s2, 0x20001")
        a("s_lshl_b32 s25, s25, 3")
        a("s_lshr_b32 s27, s2, 5")
        a("s_add_u32 s25, s25, s27")
    elif MAP1 == "2x4":
        a("s_and_b32 s24, s2, 3")
        a("s_lshl_b32 s24, s24, 1")
        a("s_bfe_u32 s25, s2, 0x10003")
        a("s_add_u32 s24, s24, s25")
        a("v_readfirstlane_b32 s26, v2")
        a("s_bfe_u32 s25, s2, 0x10002")
        a("s_lshl_b32 s25, s25, 4")
        a("s_lshr_b32 s27, s2, 4")
        a("s_add_u32 s25, s25, s27")
    a("s_cmp_ge_u32 s26, 4")
    a("s_cbranch_scc1 K1_LOADER")
    a("v_and_b32 v3, 31, v1")
    a("v_lshrrev_b32 v4, 5, v1")
    a("s_and_b32 s27, s26, 1")
    a("s_lshr_b32 s28, s26, 1")
    a("s_lshl_b32 s29, s27, 5")
    a("v_add_u32 v9, s29, v3")
    a("v_lshrrev_b32 v10, 1, v9")
    a("v_and_b32 v10, 7, v10")
    a("v_lshlrev_b32 v9, 7, v9")
    for s in range(4):
        a(f"v_add_u32 v11, {2 * s}, v4")
        a("v_xor_b32 v11, v11, v10")
        a(f"v_lshl_add_u32 v{12 + s}, v11, 4, v9")
    a("v_lshrrev_b32 v9, 2, v1")
    a("v_and_b32 v9, 3, v9")
    a("v_lshrrev_b32 v10, 1, v9")
    a("v_xor_b32 v10, s28, v10")
    a("v_lshlrev_b32 v10, 6, v10")
    a("v_lshl_add_u32 v9, v4, 3, v9")
    a("v_lshl_add_u32 v10, v9, 7, v10")
    a("v_lshrrev_b32 v9, 4, v1")
    a("v_and_b32 v9, 1, v9")
    a("v_lshl_add_u32 v10, v9, 5, v10")
    a("v_and_b32 v9, 3, v1")
    a("v_lshl_add_u32 v10, v9, 3, v10")
    a("v_add_u32 v10, 0x8000, v10")
    a("v_add_u32 v11, 0xc000, v10")
    a("v_lshlrev_b32 v5, 5, v3")
    a("v_lshl_add_u32 v5, v4, 4, v5")
    a("v_and_b32 v6, 15, v1")
    a("v_lshlrev_b32 v6, 5, v6")
    a("v_lshl_add_u32 v6, v4, 4, v6")
    a("v_lshrrev_b32 v9, 4, v3")
    a(f"v_mul_u32_u24 v9, {HS}, v9")
    a("v_add_u32 v6, v9, v6")
    ACC = 16
    FR = 64
    for r in range(48):
        a(f"v_mov_b32 v{ACC + r}, 0")
    a(f"s_mul_i32 s31, s24, {4 * HS}")
    a(f"s_mul_i32 s32, s28, {2 * HS}")
    a("s_add_u32 s31, s31, s32")
    a("s_lshl_b32 s32, s25, 11")
    a("s_add_u32 s31, s31, s32")
    a("s_lshl_b32 s32, s27, 10")
    a("s_add_u32 s31, s31, s32")
    a(f"s_add_u32 s32, s31, {HS}")
    a(f"s_add_u32 s33, s31, {WS_K}")
    a(f"s_add_u32 s34, s33, {HS}")
    a(f"s_add_u32 s35, s31, {WS_V}")
    a("s_waitcnt lgkmcnt(0)")
    srd(a, SWS, 8, WS_BYTES)
    if TOUCH:
        for so in (31, 34):
            a(f"buffer_load_dword v96, v5, s[{SWS}:{SWS + 3}], s{so} offen")
        a(f"buffer_load_dword v96, v6, s[{SWS}:{SWS + 3}], s35 offen")
        a("s_lshl_b32 s36, s2, 13")
        a(f"s_add_u32 s36, s36, {WS_O}")
        a(f"buffer_load_dword v96, v5, s[{SWS}:{SWS + 3}], s36 offen")

    def reads(c, s):
        b = c % 4
        f = FR + ((4 * c + s) % 2) * 16
        a(f"ds_read_b128 {vr(f, 4)}, v{12 + s} offset:{b * 8192}")
        breg = 10 if b < 2 else 11
        boff = (b % 2) * 24576 + s * 2048
        for p in range(3):
            a(f"ds_read_b64_tr_b16 {vr(f + 4 + 4 * p, 2)}, v{breg} offset:{boff + p * 8192}")
            a(f"ds_read_b64_tr_b16 {vr(f + 6 + 4 * p, 2)}, v{breg} offset:{boff + p * 8192 + 512}")

    for c in range(8):
        a("s_barrier")
        if c in (0, 1, 4, 7):
            a.stamp()
        reads(c, 0)
        for s in range(4):
            if s + 1 < 4:
                reads(c, s + 1)
                a("s_waitcnt lgkmcnt(7)")
            else:
                a("s_waitcnt lgkmcnt(0)")
            f = FR + ((4 * c + s) % 2) * 16
            af = vr(f, 4)
            a(f"v_mfma_f32_32x32x16_bf16 {vr(ACC, 16)}, {vr(f + 4, 4)}, {af}, {vr(ACC, 16)}")
            a(f"v_mfma_f32_32x32x16_bf16 {vr(ACC + 16, 16)}, {vr(f + 8, 4)}, {af}, {vr(ACC + 16, 16)}")
            a(f"v_mfma_f32_32x32x16_bf16 {vr(ACC + 32, 16)}, {af}, {vr(f + 12, 4)}, {vr(ACC + 32, 16)}")
    a("s_nop 7")
    a("s_nop 3")
    T = 64
    for tile, soffs in ((0, (31, 32)), (1, (33, 34))):
        for hd in range(2):
            base = ACC + 16 * tile + 8 * hd
            t = T + 4 * (2 * tile + hd)
            for q in range(4):
                a(f"v_cvt_pk_bf16_f32 v{t + q}, v{base + 2 * q}, v{base + 2 * q + 1}")
            a(f"buffer_store_dwordx4 {vr(t, 4)}, v5, s[{SWS}:{SWS + 3}], s{soffs[hd]} offen {STF}")
    for u in range(2):
        base = ACC + 32 + 8 * u
        t = T + 16 + 4 * u
        for q in range(4):
            a(f"v_cvt_pk_bf16_f32 v{t + q}, v{base + 2 * q}, v{base + 2 * q + 1}")
        a(f"buffer_store_dwordx4 {vr(t, 4)}, v6, s[{SWS}:{SWS + 3}], s35 offen offset:{u * 512} {STF}")
    a.diag_end(0, 26, "K1_END")
    a("s_endpgm")
    a.label("K1_LOADER")
    a("s_sub_u32 s26, s26, 4")
    a("v_lshrrev_b32 v5, 3, v1")
    a("v_and_b32 v6, 7, v1")
    a("s_and_b32 s27, s26, 1")
    a("v_lshrrev_b32 v7, 4, v1")
    a("s_lshl_b32 s29, s27, 2")
    a("v_add_u32 v7, s29, v7")
    a("v_xor_b32 v7, v7, v6")
    a("v_lshlrev_b32 v7, 4, v7")
    a("v_lshl_add_u32 v7, v5, 10, v7")
    a("v_lshrrev_b32 v8, 4, v1")
    a("v_and_b32 v8, 1, v8")
    a("v_lshlrev_b32 v8, 2, v8")
    a("v_xor_b32 v8, v8, v6")
    a("v_lshlrev_b32 v8, 4, v8")
    a("v_mul_u32_u24 v9, 3072, v5")
    a("v_add_u32 v8, v8, v9")
    a("s_lshl_b32 s29, s25, 16")
    a("s_lshl_b32 s30, s26, 13")
    a("s_add_u32 s29, s29, s30")
    a("s_lshl_b32 s30, s26, 10")
    a("s_mul_i32 s31, s26, 49152")
    a("s_lshl_b32 s32, s24, 7")
    a("s_add_u32 s31, s31, s32")
    a("s_lshl_b32 s32, s26, 11")
    a("s_add_u32 s32, s32, 0x8000")
    a("s_waitcnt lgkmcnt(0)")
    srd(a, SX, 4, 2048 * 512 * 2)
    srd(a, SW, 6, 512 * 1536 * 2)

    a("s_lshr_b32 s39, s2, 3")

    def dma(c):
        b = c % 4
        a(f"s_add_u32 s36, s39, {c}")
        a("s_and_b32 s36, s36, 7")
        a("s_lshl_b32 s37, s36, 7")
        a("s_add_u32 s37, s37, s29")
        a("s_mul_i32 s38, s36, 196608")
        a("s_add_u32 s38, s38, s31")
        for i2 in range(2):
            a(f"s_add_u32 s33, s37, {i2 * 32768}")
            a(f"s_add_u32 m0, s30, {b * 8192 + i2 * 4096}")
            a("s_nop 0")
            a(f"buffer_load_dwordx4 v7, s[{SX}:{SX + 3}], s33 offen lds")
        for p in range(3):
            for i2 in range(2):
                a(f"s_add_u32 s33, s38, {i2 * 8 * 3072 + p * 1024}")
                a(f"s_add_u32 m0, s32, {b * 24576 + p * 8192 + i2 * 1024}")
                a("s_nop 0")
                a(f"buffer_load_dwordx4 v8, s[{SW}:{SW + 3}], s33 offen lds")

    dma(0)
    dma(1)
    issued = 2
    for c in range(8):
        a(f"s_waitcnt vmcnt({8 * (issued - c - 1)})")
        a("s_barrier")
        while issued < min(c + 4, 8):
            dma(issued)
            issued += 1
    a.label("K1_END")
    a("s_endpgm")
    return name, 100, 40


def gen_k2(a):
    name = "attn_kernel"
    kernel_head(a, name)
    SWS = 12
    MK = 16
    a("s_cmp_ge_u32 s2, 256")
    a("s_cbranch_scc1 K2_END")
    a.diag_begin()
    a("s_load_dwordx2 s[8:9], s[0:1], 40")
    a("s_load_dwordx2 s[10:11], s[0:1], 16")
    a("v_lshrrev_b32 v2, 6, v0")
    a("v_and_b32 v1, 63, v0")
    a("s_and_b32 s50, s2, 7")
    a("s_lshl_b32 s50, s50, 2")
    a("s_bfe_u32 s51, s2, 0x20003")
    a("s_add_u32 s50, s50, s51")
    a("v_readfirstlane_b32 s52, v2")
    a("s_lshr_b32 s51, s2, 5")
    a("v_and_b32 v3, 31, v1")
    a("v_lshrrev_b32 v4, 5, v1")
    a("v_lshlrev_b32 v5, 5, v3")
    a("v_lshl_add_u32 v5, v4, 4, v5")
    a("v_lshlrev_b32 v2, 4, v1")
    a(f"s_mul_i32 s53, s50, {HS}")
    a("s_lshl_b32 s56, s51, 3")
    a("s_add_u32 s51, s56, s52")
    a("s_lshl_b32 s54, s51, 10")
    a("s_add_u32 s54, s54, s53")
    a("s_lshl_b32 s57, s52, 1")
    a("s_add_u32 s58, s56, s57")
    a("s_sub_i32 s58, s58, 8")
    a("s_add_i32 s59, s58, 1")
    a("s_max_i32 s58, s58, 0")
    a("s_max_i32 s59, s59, 0")
    a("s_lshl_b32 s58, s58, 10")
    a("s_lshl_b32 s59, s59, 10")
    a("s_add_u32 s58, s58, s53")
    a("s_add_u32 s59, s59, s53")
    a("s_lshl_b32 s57, s57, 10")
    a("s_lshl_b32 s60, s52, 10")
    a("v_add_u32 v6, s60, v5")
    a("s_waitcnt lgkmcnt(0)")
    srd(a, SWS, 8, WS_BYTES)
    QF, MPK, AC, OA, BIAS, PK = 8, 12, 20, 36, 52, 68
    SBUF = [132, 148, 164]
    KF = 180
    PA, PBb, PC = 216, 224, 232
    for k, (sg, ws, lo) in enumerate(((58, WS_K, 0), (59, WS_K, 1024), (58, WS_V, 16384), (59, WS_V, 17408))):
        a(f"s_add_u32 s61, s{sg}, {ws}")
        a(f"s_add_u32 m0, s57, {lo}")
        a("s_nop 0")
        a(f"buffer_load_dwordx4 v2, s[{SWS}:{SWS + 3}], s61 offen lds")
        if k == 1:
            a(f"buffer_load_dwordx4 {vr(QF, 4)}, v5, s[{SWS}:{SWS + 3}], s54 offen")
    a("s_lshl_b32 s55, s51, 5")
    a("s_add_u32 s55, s55, s50")
    a("s_lshl_b32 s55, s55, 10")
    a(f"s_add_u32 s55, s55, {WS_O}")
    if TOUCH:
        a(f"buffer_load_dword v251, v5, s[{SWS}:{SWS + 3}], s55 offen")
    srd(a, 64, 10, 512 * 512 * 2)
    a("s_lshr_b32 s68, s2, 3")
    a("s_lshl_b32 s68, s68, 4")
    a("s_lshl_b32 s69, s52, 1")
    a("s_add_u32 s68, s68, s69")
    a("s_lshl_b32 s68, s68, 10")
    a("s_and_b32 s69, s2, 1")
    a("s_lshl_b32 s69, s69, 9")
    a("s_add_u32 s68, s68, s69")
    a("v_lshlrev_b32 v7, 4, v3")
    a("v_lshl_add_u32 v7, v4, 10, v7")
    if WOPF:
        a("buffer_load_dwordx4 v[252:255], v7, s[64:67], s68 offen")
    a("v_lshrrev_b32 v7, 3, v3")
    a("v_lshlrev_b32 v7, 1, v7")
    a("v_bfe_u32 v2, v3, 1, 1")
    a("v_add_u32 v7, v7, v2")
    a("v_bfe_u32 v2, v3, 2, 1")
    a("v_xor_b32 v2, v2, v4")
    a("v_lshl_add_u32 v7, v2, 6, v7")
    a("v_and_b32 v2, 1, v3")
    a("v_lshlrev_b32 v2, 4, v2")
    a(f"v_mov_b32 v{BIAS}, 0x3eb9")
    a(f"v_mov_b32 v{BIAS + 1}, 0xba2c")
    a(f"v_lshlrev_b32 v{BIAS}, v2, v{BIAS}")
    a(f"v_lshlrev_b32 v{BIAS + 1}, v2, v{BIAS + 1}")
    for t in range(8):
        a(f"v_cmp_eq_u32 s[{MK + 2 * t}:{MK + 2 * t + 1}], {t}, v7")
    a("s_nop 1")
    for t in range(8):
        a(f"v_cndmask_b32 v{AC + t}, 0, v{BIAS}, s[{MK + 2 * t}:{MK + 2 * t + 1}]")
        a(f"v_cndmask_b32 v{AC + 8 + t}, 0, v{BIAS + 1}, s[{MK + 2 * t}:{MK + 2 * t + 1}]")
    a("v_lshlrev_b32 v7, 2, v4")
    a("v_sub_u32 v7, v3, v7")
    for r in range(16):
        c = 8 * (r // 4) + (r % 4)
        a(f"v_cmp_le_i32 s[{MK + 2 * r}:{MK + 2 * r + 1}], {c}, v7")
    a("v_mov_b32 v3, 0xffff")
    a("v_mov_b32 v7, 0xffff0000")
    a("s_nop 1")
    for j in range(8):
        a(f"v_cndmask_b32 v{MPK + j}, 0, v3, s[{MK + 4 * j}:{MK + 4 * j + 1}]")
        a(f"v_cndmask_b32 v{PA + j}, 0, v7, s[{MK + 4 * j + 2}:{MK + 4 * j + 3}]")
    for j in range(8):
        a(f"v_or_b32 v{MPK + j}, v{MPK + j}, v{PA + j}")
    for r in range(16):
        a(f"v_mov_b32 v{OA + r}, 0")
    a("v_mov_b32 v3, 0xff800000")
    a("v_mov_b32 v7, 0xff800000")
    a("v_mov_b32 v4, 0x3f803f80")
    a.stamp()
    a(f"s_waitcnt vmcnt({2 + WOPF + TOUCH})")
    a("s_barrier")
    a.stamp()
    korder = [0, 8, 1, 2, 3, 4, 5, 6, 7]
    for i in korder:
        a(f"ds_read_b128 {vr(KF + 4 * i, 4)}, v6 offset:{i * 1024}")

    def sbuf(i):
        if i == 0:
            return SBUF[0]
        if i == 8:
            return SBUF[1]
        return [SBUF[2], SBUF[0], SBUF[1]][(i - 1) % 3]

    def smfma(n):
        i = korder[n]
        return [f"s_waitcnt lgkmcnt({8 - n})",
                f"v_mfma_f32_32x32x16_bf16 {vr(sbuf(i), 16)}, {vr(KF + 4 * i, 4)}, {vr(QF, 4)}, 0"]

    vorder = [8, 0, 1, 2, 3, 4, 5, 6, 7]

    def vread(ns):
        o = ["s_mov_b32 exec_lo, 0xffff", "s_mov_b32 exec_hi, 0xffff"]
        for n in ns:
            i = vorder[n]
            b = KF + 8 * (n % 4)
            o += [f"ds_read_b128 {vr(b + 4 * u, 4)}, v6 offset:{16384 + i * 1024 + u * 512}" for u in range(2)]
        o.append("s_mov_b64 exec, -1")
        return o

    def emit_inter(valu, extra, start=1, step=None):
        n = len(extra)
        if step is None:
            step = max(1, (len(valu) - start) // max(n, 1))
        k = 0
        for idx, l in enumerate(valu):
            a(l)
            if k < n and idx >= start and (idx - start) % step == 0:
                for x in extra[k]:
                    a(x)
                k += 1
        while k < n:
            for x in extra[k]:
                a(x)
            k += 1

    def proc(src, slot):
        o = []
        for q in range(8):
            m = (3, 7)[q & 1]
            o.append(f"v_max3_f32 v{m}, v{m}, v{src + 2 * q}, v{src + 2 * q + 1}")
            o.append(f"v_cvt_pk_bf16_f32 v{PK + 8 * slot + q}, v{src + 2 * q}, v{src + 2 * q + 1}")
        return o

    for n in range(3):
        for l in smfma(n):
            a(l)
    a("s_nop 7")
    a("s_nop 1")
    a("s_cmp_ge_u32 s51, 8")
    a("s_cbranch_scc1 K2_HAVE0")
    for r in range(16):
        a(f"v_mov_b32 v{SBUF[0] + r}, 0xf14a0000")
    a.label("K2_HAVE0")
    for r in range(16):
        a(f"v_cndmask_b32 v{SBUF[1] + r}, v{SBUF[0] + r}, v{SBUF[1] + r}, s[{MK + 2 * r}:{MK + 2 * r + 1}]")
    for l in smfma(3):
        a(l)
    for l in proc(SBUF[1], 0):
        a(l)
    for i in range(1, 8):
        if i + 3 < 9:
            for l in smfma(i + 3):
                a(l)
        if i == 5:
            for r in range(16):
                a(f"v_mov_b32 v{KF + r}, v4")
            a(f"s_waitcnt vmcnt({WOPF + TOUCH})")
            a("s_barrier")
            for l in vread([0, 1]):
                a(l)
        if i == 6:
            for r in range(16):
                a(f"v_mov_b32 v{KF + 16 + r}, v4")
            for l in vread([2, 3]):
                a(l)
        a(f"s_cmp_ge_u32 s51, {8 - i}")
        a(f"s_cbranch_scc1 K2_T{i}_OK")
        for q in range(8):
            a(f"v_mov_b32 v{PK + 8 * i + q}, 0xf14af14a")
        a("s_nop 3")
        a(f"s_branch K2_T{i}_DONE")
        a.label(f"K2_T{i}_OK")
        for l in proc(sbuf(i), i):
            a(l)
        a.label(f"K2_T{i}_DONE")
    a.stamp()
    a("v_max_f32 v3, v3, v7")
    a("v_mov_b32 v7, v3")
    a("s_nop 1")
    a("v_permlane32_swap_b32 v3, v7")
    a("s_nop 1")
    a("v_max_f32 v3, v3, v7")
    a("v_cvt_pk_bf16_f32 v3, 0, v3")
    a("v_mul_f32 v3, 0xbeb8aa00, v3")
    for r in range(16):
        a(f"v_mov_b32 v{BIAS + r}, v3")
    DB = [SBUF[0], SBUF[1]]

    def scale(i):
        d = DB[i % 2]
        p = PK + 8 * i
        return [[f"v_mfma_f32_32x32x16_bf16 {vr(d, 16)}, {vr(AC, 4)}, {vr(p, 4)}, {vr(BIAS, 16)}"],
                [f"v_mfma_f32_32x32x16_bf16 {vr(d, 16)}, {vr(AC + 4, 4)}, {vr(p + 4, 4)}, {vr(d, 16)}"],
                [f"v_mfma_f32_32x32x16_bf16 {vr(d, 16)}, {vr(AC + 8, 4)}, {vr(p, 4)}, {vr(d, 16)}"],
                [f"v_mfma_f32_32x32x16_bf16 {vr(d, 16)}, {vr(AC + 12, 4)}, {vr(p + 4, 4)}, {vr(d, 16)}"]]

    def expo(i, pdst):
        d = DB[i % 2]
        o = [f"v_exp_f32 v{d + r}, v{d + r}" for r in range(16)]
        o.append("s_nop 0")
        o += [f"v_cvt_pk_bf16_f32 v{pdst + q}, v{d + 2 * q}, v{d + 2 * q + 1}" for q in range(8)]
        return o

    def pv(n, psrc):
        b = KF + 8 * (n % 4)
        return [[f"v_mfma_f32_32x32x16_bf16 {vr(OA, 16)}, {vr(b + 4 * u, 4)}, {vr(psrc + 4 * u, 4)}, {vr(OA, 16)}"] for u in range(2)]

    a("s_nop 1")
    for g in scale(0):
        a(g[0])
    a("s_nop 7")
    a("s_nop 3")
    pend = []
    for i in range(8):
        pdst = PA if i % 2 == 0 else PBb
        if i == 0:
            pdst = PA
        elif i == 1:
            pdst = PA
        else:
            pdst = PBb if i % 2 == 0 else PA
        val = expo(i, pdst)
        if i == 0:
            for q in range(8):
                val.append(f"v_and_b32 v{PBb + q}, v{PA + q}, v{MPK + q}")
                val.append(f"v_bfi_b32 v{PC + q}, v{MPK + q}, 0, v{PA + q}")
        extra = (scale(i + 1) if i + 1 < 8 else []) + pend
        emit_inter(val, extra, start=1, step=2 if len(extra) > 6 else 3)
        if i == 0:
            p0, p1 = pv(0, PBb), pv(1, PC)
            pend = [["s_waitcnt lgkmcnt(4)"] + p0[0], p0[1], p1[0], p1[1] + vread([4, 5])]
        else:
            n = i + 1
            issued = min(n + 3, 8)
            p0 = pv(n, pdst)
            pend = [[f"s_waitcnt lgkmcnt({2 * (issued - n)})"] + p0[0], p0[1] + (vread([n + 4]) if n + 4 <= 8 else [])]
    a("s_nop 1")
    for g in pend:
        for l in g:
            a(l)
    a("s_nop 7")
    a("s_nop 7")
    a(f"v_rcp_f32 v7, v{OA + 8}")
    a("s_nop 0")
    for r in range(8):
        a(f"v_mul_f32 v{OA + r}, v{OA + r}, v7")
    T = SBUF[2]
    for q in range(4):
        a(f"v_cvt_pk_bf16_f32 v{T + q}, v{OA + 2 * q}, v{OA + 2 * q + 1}")
    a(f"buffer_store_dwordx4 {vr(T, 4)}, v5, s[{SWS}:{SWS + 3}], s55 offen {STF}")
    a("s_sub_u32 s63, s52, 7")
    a.diag_end(1, 52 if DIAG != 2 else 63, "K2_END")
    a.label("K2_END")
    a("s_endpgm")
    return name, 256, 80


def gen_k3(a):
    name = "oproj_kernel"
    kernel_head(a, name)
    SW, SWS, SO = 12, 16, 20
    a("s_cmp_ge_u32 s2, 256")
    a("s_cbranch_scc1 K3_END")
    a.diag_begin()
    a("s_load_dwordx4 s[4:7], s[0:1], 16")
    a("s_load_dwordx2 s[8:9], s[0:1], 40")
    a("v_lshrrev_b32 v2, 6, v0")
    a("v_and_b32 v1, 63, v0")
    a("s_and_b32 s25, s2, 1")
    a("s_lshl_b32 s25, s25, 2")
    a("s_bfe_u32 s24, s2, 0x20003")
    a("s_add_u32 s25, s25, s24")
    a("v_readfirstlane_b32 s26, v2")
    a("s_bfe_u32 s24, s2, 0x20001")
    a("s_lshl_b32 s24, s24, 3")
    a("s_lshr_b32 s27, s2, 5")
    a("s_add_u32 s24, s24, s27")
    a("s_cmp_ge_u32 s26, 4")
    a("s_cbranch_scc1 K3_LOADER")
    a("v_and_b32 v3, 31, v1")
    a("v_lshrrev_b32 v4, 5, v1")
    a("s_and_b32 s27, s26, 1")
    a("s_lshr_b32 s28, s26, 1")
    a("v_lshlrev_b32 v11, 5, v3")
    a("v_lshl_add_u32 v11, v4, 4, v11")
    a("s_lshl_b32 s29, s27, 15")
    a("v_add_u32 v11, s29, v11")
    a("v_lshrrev_b32 v8, 2, v1")
    a("v_and_b32 v8, 3, v8")
    a("v_lshrrev_b32 v9, 1, v8")
    a("v_xor_b32 v9, s28, v9")
    a("v_lshlrev_b32 v9, 6, v9")
    a("v_lshl_add_u32 v8, v4, 2, v8")
    a("v_lshl_add_u32 v8, v8, 7, v9")
    a("v_lshrrev_b32 v9, 4, v1")
    a("v_and_b32 v9, 1, v9")
    a("v_lshl_add_u32 v8, v9, 5, v8")
    a("v_and_b32 v9, 1, v1")
    a("v_lshl_add_u32 v8, v9, 4, v8")
    a("v_lshrrev_b32 v9, 1, v1")
    a("v_and_b32 v9, 1, v9")
    a("v_lshl_add_u32 v8, v9, 3, v8")
    a("v_add_u32 v8, 0x10000, v8")
    a("v_lshlrev_b32 v10, 10, v3")
    a("v_lshl_add_u32 v10, v4, 4, v10")
    a("s_lshl_b32 s31, s24, 16")
    a("s_lshl_b32 s32, s27, 15")
    a("s_add_u32 s31, s31, s32")
    a("s_lshl_b32 s32, s25, 7")
    a("s_add_u32 s31, s31, s32")
    a("s_lshl_b32 s32, s28, 6")
    a("s_add_u32 s31, s31, s32")
    ACC = 16
    FR = 32
    for r in range(16):
        a(f"v_mov_b32 v{ACC + r}, 0")
    a("s_waitcnt lgkmcnt(0)")
    srd(a, SO, 6, 2048 * 512 * 2)
    if TOUCH:
        a(f"buffer_load_dword v17, v10, s[{SO}:{SO + 3}], s31 offen")
        a("s_waitcnt vmcnt(0)")
        a("v_mov_b32 v17, 0")

    def reads(s):
        f = FR + (s % 4) * 8
        a(f"ds_read_b128 {vr(f, 4)}, v11 offset:{s * 1024}")
        a(f"ds_read_b64_tr_b16 {vr(f + 4, 2)}, v8 offset:{s * 2048}")
        a(f"ds_read_b64_tr_b16 {vr(f + 6, 2)}, v8 offset:{s * 2048 + 1024}")

    NPH = 8
    SP = 32 // NPH
    for j in range(NPH):
        a("s_barrier")
        if j in (0, NPH - 1):
            a.stamp()
        pre = min(3, SP)
        for s in range(SP * j, SP * j + pre):
            reads(s)
        for s in range(SP * j, SP * j + SP):
            if s + 3 < SP * j + SP:
                reads(s + 3)
                a("s_waitcnt lgkmcnt(9)")
            else:
                a(f"s_waitcnt lgkmcnt({3 * (SP * j + SP - 1 - s)})")
            f = FR + (s % 4) * 8
            a(f"v_mfma_f32_32x32x16_bf16 {vr(ACC, 16)}, {vr(f + 4, 4)}, {vr(f, 4)}, {vr(ACC, 16)}")
    STG = 131072
    a("s_lshl_b32 s32, s27, 5")
    a("v_add_u32 v12, s32, v3")
    a("v_mul_u32_u24 v12, 144, v12")
    a("v_lshl_add_u32 v12, v4, 4, v12")
    a("s_lshl_b32 s32, s28, 6")
    a(f"s_add_u32 s32, s32, {STG}")
    a("v_add_u32 v12, s32, v12")
    a("v_lshrrev_b32 v13, 3, v1")
    a("s_lshl_b32 s32, s26, 4")
    a("v_add_u32 v13, s32, v13")
    a("v_and_b32 v14, 7, v1")
    a("v_lshlrev_b32 v15, 10, v13")
    a("v_lshl_add_u32 v15, v14, 4, v15")
    a("v_mul_u32_u24 v13, 144, v13")
    a("v_lshl_add_u32 v13, v14, 4, v13")
    a(f"v_add_u32 v13, {STG}, v13")
    a("s_lshl_b32 s31, s24, 16")
    a("s_lshl_b32 s32, s25, 7")
    a("s_add_u32 s31, s31, s32")
    T = 32
    for u in range(2):
        for q in range(4):
            a(f"v_cvt_pk_bf16_f32 v{T + 4 * u + q}, v{ACC + 8 * u + 2 * q}, v{ACC + 8 * u + 2 * q + 1}")
        a(f"ds_write_b128 v12, {vr(T + 4 * u, 4)} offset:{u * 32}")
    a("s_waitcnt lgkmcnt(0)")
    a("s_barrier")
    for u in range(2):
        a(f"ds_read_b128 {vr(T + 8 + 4 * u, 4)}, v13 offset:{u * 8 * 144}")
    for u in range(2):
        a(f"s_waitcnt lgkmcnt({1 - u})")
        a(f"buffer_store_dwordx4 {vr(T + 8 + 4 * u, 4)}, v15, s[{SO}:{SO + 3}], s31 offen offset:0 {STF3}" if u == 0 else
          f"buffer_store_dwordx4 {vr(T + 8 + 4 * u, 4)}, v16, s[{SO}:{SO + 3}], s31 offen {STF3}")
        if u == 0:
            a("v_add_u32 v16, 8192, v15")
    a.diag_end(2, 26, "K3_END")
    a("s_endpgm")
    a.label("K3_LOADER")
    a("s_sub_u32 s26, s26, 4")
    a("v_lshlrev_b32 v5, 4, v1")
    a("v_lshrrev_b32 v6, 4, v1")
    a("v_and_b32 v6, 1, v6")
    a("v_lshlrev_b32 v6, 2, v6")
    a("v_and_b32 v7, 7, v1")
    a("v_xor_b32 v6, v6, v7")
    a("v_lshlrev_b32 v6, 4, v6")
    a("v_lshrrev_b32 v7, 3, v1")
    a("v_lshl_add_u32 v6, v7, 10, v6")
    a("s_and_b32 s27, s26, 1")
    a("s_lshr_b32 s28, s26, 1")
    a("s_lshl_b32 s33, s24, 16")
    a("s_lshl_b32 s34, s27, 15")
    a("s_add_u32 s33, s33, s34")
    a("s_lshl_b32 s35, s28, 11")
    a("s_add_u32 s33, s33, s35")
    a(f"s_add_u32 s33, s33, {WS_O}")
    a("s_add_u32 s34, s34, s35")
    a("s_lshl_b32 s35, s26, 14")
    a("s_lshl_b32 s36, s25, 7")
    a("s_add_u32 s35, s35, s36")
    a("s_lshl_b32 s36, s26, 11")
    a("s_add_u32 s36, s36, 0x10000")
    a("s_waitcnt lgkmcnt(0)")
    srd(a, SW, 4, 512 * 512 * 2)
    srd(a, SWS, 8, WS_BYTES)
    a("s_lshr_b32 s39, s2, 3")

    def dma3(j):
        a(f"s_add_u32 s40, s39, {j}")
        a("s_and_b32 s40, s40, 7")
        a("s_lshl_b32 s41, s40, 12")
        a("s_add_u32 s41, s41, s33")
        a("s_lshl_b32 s42, s40, 16")
        a("s_add_u32 s42, s42, s35")
        for i in range(2):
            a(f"s_add_u32 s37, s41, {i * 1024}")
            a(f"s_add_u32 m0, s34, {j * 4096 + i * 1024}")
            a("s_nop 0")
            a(f"buffer_load_dwordx4 v5, s[{SWS}:{SWS + 3}], s37 offen lds")
        for i in range(2):
            a(f"s_add_u32 s37, s42, {i * 8192}")
            a(f"s_add_u32 m0, s36, {j * 8192 + i * 1024}")
            a("s_nop 0")
            a(f"buffer_load_dwordx4 v6, s[{SW}:{SW + 3}], s37 offen lds")

    LA3 = int(os.environ.get("LA3", "4"))
    for j in range(LA3):
        dma3(j)
    for j in range(NPH):
        issued = min(j + LA3, NPH)
        a(f"s_waitcnt vmcnt({4 * (issued - j - 1)})")
        a("s_barrier")
        if j + LA3 < NPH:
            dma3(j + LA3)
    a.label("K3_END")
    a("s_endpgm")
    return name, 64, 48


def main():
    a = Asm()
    hdr = open("standalone__sliding_block__prompt.s.ref").read().split("\n")
    for line in hdr:
        if line.startswith("; @launch") or not line.startswith(";"):
            break
        a.raw(line)
    a.raw("; @launch kernel=qkv_kernel grid=(256,1,1) block=(512,1,1) lds=131072")
    a.raw("; @launch kernel=attn_kernel grid=(256,1,1) block=(512,1,1) lds=33280")
    a.raw("; @launch kernel=oproj_kernel grid=(256,1,1) block=(512,1,1) lds=140288")
    a.raw('.amdgcn_target "amdgcn-amd-amdhsa--gfx950"')
    a.raw(".text")
    ks = [gen_k1(a), gen_k2(a), gen_k3(a)]
    a.raw('.section .rodata,"a"')
    for name, v, s in ks:
        kd(a, name, v, s)
    txt = a.text()
    if int(os.environ.get("LOADER_FIRST", "1")):
        for k, end in (("K1", "K1_END"), ("K3", "K3_END")):
            br = f"    s_cmp_ge_u32 s26, 4\n    s_cbranch_scc1 {k}_LOADER\n"
            i0 = txt.index(br)
            i1 = txt.index(f"{k}_LOADER:\n")
            i2 = txt.index(f"{end}:\n")
            comp = txt[i0 + len(br):i1]
            load = txt[i1 + len(f"{k}_LOADER:\n"):i2]
            txt = (txt[:i0] + f"    s_cmp_lt_u32 s26, 4\n    s_cbranch_scc1 {k}_COMPUTE\n" + load + "    s_endpgm\n"
                   + f"{k}_COMPUTE:\n" + comp + txt[i2:])
    open(OUT, "w").write(txt)


main()
```

```python
import sys

OUT = sys.argv[1] if len(sys.argv) > 1 else "standalone__sliding_block__prompt.s"

MB = 1 << 20
WS_Q, WS_K, WS_V, WS_O = 0, 65536, 131072, 6 * MB
HS = 196608
WS_BYTES = 8 * MB


import os
DIAG = int(os.environ.get("DIAG", "0"))
STF = os.environ.get("STF", "sc1")
STF3 = os.environ.get("STF3", "sc1")
TOUCH = int(os.environ.get("TOUCH", "0"))
WOPF = int(os.environ.get("WOPF", "1"))
PRIO = int(os.environ.get("PRIO", "0"))


class Asm:
    def __init__(self):
        self.lines = []
        self.nst = 0

    def stamp(self):
        if DIAG:
            i = self.nst
            self.nst += 1
            self(f"s_memtime s[{82 + 2 * i}:{83 + 2 * i}]")

    def diag_begin(self):
        if DIAG:
            self.nst = 0
            self("s_memrealtime s[100:101]")
            self.stamp()

    def diag_end(self, kidx, wave_sreg, lab):
        if not DIAG:
            return
        self.stamp()
        self("s_waitcnt vmcnt(0) lgkmcnt(0)")
        self.stamp()
        self("s_memrealtime s[98:99]")
        self("s_load_dwordx2 s[76:77], s[0:1], 40")
        self("s_waitcnt lgkmcnt(0)")
        self(f"s_cmp_lg_u32 s{wave_sreg}, 0")
        self(f"s_cbranch_scc1 {lab}")
        self("s_and_b32 s77, s77, 0xffff")
        self("s_mov_b32 s78, 0x2000000")
        self("s_mov_b32 s79, 0x00020000")
        self("s_lshl_b32 s80, s2, 7")
        self(f"s_add_u32 s80, s80, {16 * MB + kidx * 65536}")
        self("v_mov_b32 v1, 0")
        self("v_mov_b32 v2, s100")
        self("buffer_store_dword v2, v1, s[76:79], s80 offen")
        self("v_mov_b32 v2, s98")
        self("buffer_store_dword v2, v1, s[76:79], s80 offen offset:4")
        for i in range(self.nst):
            self(f"s_sub_u32 s81, s{82 + 2 * i}, s82")
            self("v_mov_b32 v2, s81")
            self(f"buffer_store_dword v2, v1, s[76:79], s80 offen offset:{8 + 4 * i}")

    def __call__(self, s):
        self.lines.append("    " + s)

    def label(self, l):
        self.lines.append(l + ":")

    def raw(self, s):
        self.lines.append(s)

    def text(self):
        return "\n".join(self.lines) + "\n"


def vr(base, n):
    return f"v[{base}:{base + n - 1}]"


def srd(a, d, ptr_lo, nbytes):
    a(f"s_mov_b32 s{d}, s{ptr_lo}")
    a(f"s_and_b32 s{d + 1}, s{ptr_lo + 1}, 0xffff")
    a(f"s_mov_b32 s{d + 2}, {nbytes:#x}")
    a(f"s_mov_b32 s{d + 3}, 0x00020000")


def kernel_head(a, name):
    a.raw(f".globl {name}")
    a.raw(".p2align 8")
    a.raw(f".type {name},@function")
    a.label(name)


def kd(a, name, vgpr, sgpr):
    acc = (vgpr + 3) // 4 * 4
    a.raw(".p2align 6")
    a.raw(f".amdhsa_kernel {name}")
    a.raw(f"  .amdhsa_next_free_vgpr {vgpr}")
    a.raw(f"  .amdhsa_next_free_sgpr {102 if DIAG else sgpr}")
    a.raw(f"  .amdhsa_accum_offset {acc}")
    a.raw("  .amdhsa_group_segment_fixed_size 0")
    a.raw("  .amdhsa_kernarg_size 48")
    a.raw("  .amdhsa_user_sgpr_count 2")
    a.raw("  .amdhsa_user_sgpr_kernarg_segment_ptr 1")
    a.raw("  .amdhsa_system_sgpr_workgroup_id_x 1")
    a.raw(".end_amdhsa_kernel")


def gen_k1(a):
    name = "qkv_kernel"
    kernel_head(a, name)
    SX, SW, SWS = 12, 16, 20
    a("s_cmp_ge_u32 s2, 256")
    a("s_cbranch_scc1 K1_END")
    a.diag_begin()
    a("s_load_dwordx4 s[4:7], s[0:1], 0")
    a("s_load_dwordx2 s[8:9], s[0:1], 40")
    a("v_lshrrev_b32 v2, 6, v0")
    a("v_and_b32 v1, 63, v0")
    MAP1 = os.environ.get("MAP1", "2x4")
    if MAP1 == "1x8":
        a("s_and_b32 s24, s2, 7")
        a("s_lshr_b32 s25, s2, 3")
        a("v_readfirstlane_b32 s26, v2")
        a("s_nop 0")
    elif MAP1 == "4x2":
        a("s_and_b32 s24, s2, 1")
        a("s_lshl_b32 s24, s24, 2")
        a("s_bfe_u32 s25, s2, 0x20003")
        a("s_add_u32 s24, s24, s25")
        a("v_readfirstlane_b32 s26, v2")
        a("s_bfe_u32 s25, s2, 0x20001")
        a("s_lshl_b32 s25, s25, 3")
        a("s_lshr_b32 s27, s2, 5")
        a("s_add_u32 s25, s25, s27")
    elif MAP1 == "2x4":
        a("s_and_b32 s24, s2, 3")
        a("s_lshl_b32 s24, s24, 1")
        a("s_bfe_u32 s25, s2, 0x10003")
        a("s_add_u32 s24, s24, s25")
        a("v_readfirstlane_b32 s26, v2")
        a("s_bfe_u32 s25, s2, 0x10002")
        a("s_lshl_b32 s25, s25, 4")
        a("s_lshr_b32 s27, s2, 4")
        a("s_add_u32 s25, s25, s27")
    a("s_cmp_ge_u32 s26, 4")
    a("s_cbranch_scc1 K1_LOADER")
    a("v_and_b32 v3, 31, v1")
    a("v_lshrrev_b32 v4, 5, v1")
    a("s_and_b32 s27, s26, 1")
    a("s_lshr_b32 s28, s26, 1")
    a("s_lshl_b32 s29, s27, 5")
    a("v_add_u32 v9, s29, v3")
    a("v_lshrrev_b32 v10, 1, v9")
    a("v_and_b32 v10, 7, v10")
    a("v_lshlrev_b32 v9, 7, v9")
    for s in range(4):
        a(f"v_add_u32 v11, {2 * s}, v4")
        a("v_xor_b32 v11, v11, v10")
        a(f"v_lshl_add_u32 v{12 + s}, v11, 4, v9")
    a("v_lshrrev_b32 v9, 2, v1")
    a("v_and_b32 v9, 3, v9")
    a("v_lshrrev_b32 v10, 1, v9")
    a("v_xor_b32 v10, s28, v10")
    a("v_lshlrev_b32 v10, 6, v10")
    a("v_lshl_add_u32 v9, v4, 3, v9")
    a("v_lshl_add_u32 v10, v9, 7, v10")
    a("v_lshrrev_b32 v9, 4, v1")
    a("v_and_b32 v9, 1, v9")
    a("v_lshl_add_u32 v10, v9, 5, v10")
    a("v_and_b32 v9, 3, v1")
    a("v_lshl_add_u32 v10, v9, 3, v10")
    a("v_add_u32 v10, 0x8000, v10")
    a("v_add_u32 v11, 0xc000, v10")
    a("v_lshlrev_b32 v5, 5, v3")
    a("v_lshl_add_u32 v5, v4, 4, v5")
    a("v_and_b32 v6, 15, v1")
    a("v_lshlrev_b32 v6, 5, v6")
    a("v_lshl_add_u32 v6, v4, 4, v6")
    a("v_lshrrev_b32 v9, 4, v3")
    a(f"v_mul_u32_u24 v9, {HS}, v9")
    a("v_add_u32 v6, v9, v6")
    ACC = 16
    FR = 64
    for r in range(48):
        a(f"v_mov_b32 v{ACC + r}, 0")
    a(f"s_mul_i32 s31, s24, {4 * HS}")
    a(f"s_mul_i32 s32, s28, {2 * HS}")
    a("s_add_u32 s31, s31, s32")
    a("s_lshl_b32 s32, s25, 11")
    a("s_add_u32 s31, s31, s32")
    a("s_lshl_b32 s32, s27, 10")
    a("s_add_u32 s31, s31, s32")
    a(f"s_add_u32 s32, s31, {HS}")
    a(f"s_add_u32 s33, s31, {WS_K}")
    a(f"s_add_u32 s34, s33, {HS}")
    a(f"s_add_u32 s35, s31, {WS_V}")
    a("s_waitcnt lgkmcnt(0)")
    srd(a, SWS, 8, WS_BYTES)
    if TOUCH:
        for so in (31, 34):
            a(f"buffer_load_dword v96, v5, s[{SWS}:{SWS + 3}], s{so} offen")
        a(f"buffer_load_dword v96, v6, s[{SWS}:{SWS + 3}], s35 offen")
        a("s_lshl_b32 s36, s2, 13")
        a(f"s_add_u32 s36, s36, {WS_O}")
        a(f"buffer_load_dword v96, v5, s[{SWS}:{SWS + 3}], s36 offen")

    def reads(c, s):
        b = c % 4
        f = FR + ((4 * c + s) % 2) * 16
        a(f"ds_read_b128 {vr(f, 4)}, v{12 + s} offset:{b * 8192}")
        breg = 10 if b < 2 else 11
        boff = (b % 2) * 24576 + s * 2048
        for p in range(3):
            a(f"ds_read_b64_tr_b16 {vr(f + 4 + 4 * p, 2)}, v{breg} offset:{boff + p * 8192}")
            a(f"ds_read_b64_tr_b16 {vr(f + 6 + 4 * p, 2)}, v{breg} offset:{boff + p * 8192 + 512}")

    for c in range(8):
        a("s_barrier")
        if c in (0, 1, 4, 7):
            a.stamp()
        reads(c, 0)
        for s in range(4):
            if s + 1 < 4:
                reads(c, s + 1)
                a("s_waitcnt lgkmcnt(7)")
            else:
                a("s_waitcnt lgkmcnt(0)")
            f = FR + ((4 * c + s) % 2) * 16
            af = vr(f, 4)
            a(f"v_mfma_f32_32x32x16_bf16 {vr(ACC, 16)}, {vr(f + 4, 4)}, {af}, {vr(ACC, 16)}")
            a(f"v_mfma_f32_32x32x16_bf16 {vr(ACC + 16, 16)}, {vr(f + 8, 4)}, {af}, {vr(ACC + 16, 16)}")
            a(f"v_mfma_f32_32x32x16_bf16 {vr(ACC + 32, 16)}, {af}, {vr(f + 12, 4)}, {vr(ACC + 32, 16)}")
    a("s_nop 7")
    a("s_nop 3")
    T = 64
    for tile, soffs in ((0, (31, 32)), (1, (33, 34))):
        for hd in range(2):
            base = ACC + 16 * tile + 8 * hd
            t = T + 4 * (2 * tile + hd)
            for q in range(4):
                a(f"v_cvt_pk_bf16_f32 v{t + q}, v{base + 2 * q}, v{base + 2 * q + 1}")
            a(f"buffer_store_dwordx4 {vr(t, 4)}, v5, s[{SWS}:{SWS + 3}], s{soffs[hd]} offen {STF}")
    for u in range(2):
        base = ACC + 32 + 8 * u
        t = T + 16 + 4 * u
        for q in range(4):
            a(f"v_cvt_pk_bf16_f32 v{t + q}, v{base + 2 * q}, v{base + 2 * q + 1}")
        a(f"buffer_store_dwordx4 {vr(t, 4)}, v6, s[{SWS}:{SWS + 3}], s35 offen offset:{u * 512} {STF}")
    a.diag_end(0, 26, "K1_END")
    a("s_endpgm")
    a.label("K1_LOADER")
    a("s_sub_u32 s26, s26, 4")
    a("v_lshrrev_b32 v5, 3, v1")
    a("v_and_b32 v6, 7, v1")
    a("s_and_b32 s27, s26, 1")
    a("v_lshrrev_b32 v7, 4, v1")
    a("s_lshl_b32 s29, s27, 2")
    a("v_add_u32 v7, s29, v7")
    a("v_xor_b32 v7, v7, v6")
    a("v_lshlrev_b32 v7, 4, v7")
    a("v_lshl_add_u32 v7, v5, 10, v7")
    a("v_lshrrev_b32 v8, 4, v1")
    a("v_and_b32 v8, 1, v8")
    a("v_lshlrev_b32 v8, 2, v8")
    a("v_xor_b32 v8, v8, v6")
    a("v_lshlrev_b32 v8, 4, v8")
    a("v_mul_u32_u24 v9, 3072, v5")
    a("v_add_u32 v8, v8, v9")
    a("s_lshl_b32 s29, s25, 16")
    a("s_lshl_b32 s30, s26, 13")
    a("s_add_u32 s29, s29, s30")
    a("s_lshl_b32 s30, s26, 10")
    a("s_mul_i32 s31, s26, 49152")
    a("s_lshl_b32 s32, s24, 7")
    a("s_add_u32 s31, s31, s32")
    a("s_lshl_b32 s32, s26, 11")
    a("s_add_u32 s32, s32, 0x8000")
    a("s_waitcnt lgkmcnt(0)")
    srd(a, SX, 4, 2048 * 512 * 2)
    srd(a, SW, 6, 512 * 1536 * 2)

    a("s_lshr_b32 s39, s2, 3")

    def dma(c):
        b = c % 4
        a(f"s_add_u32 s36, s39, {c}")
        a("s_and_b32 s36, s36, 7")
        a("s_lshl_b32 s37, s36, 7")
        a("s_add_u32 s37, s37, s29")
        a("s_mul_i32 s38, s36, 196608")
        a("s_add_u32 s38, s38, s31")
        for i2 in range(2):
            a(f"s_add_u32 s33, s37, {i2 * 32768}")
            a(f"s_add_u32 m0, s30, {b * 8192 + i2 * 4096}")
            a("s_nop 0")
            a(f"buffer_load_dwordx4 v7, s[{SX}:{SX + 3}], s33 offen lds")
        for p in range(3):
            for i2 in range(2):
                a(f"s_add_u32 s33, s38, {i2 * 8 * 3072 + p * 1024}")
                a(f"s_add_u32 m0, s32, {b * 24576 + p * 8192 + i2 * 1024}")
                a("s_nop 0")
                a(f"buffer_load_dwordx4 v8, s[{SW}:{SW + 3}], s33 offen lds")

    dma(0)
    dma(1)
    issued = 2
    for c in range(8):
        a(f"s_waitcnt vmcnt({8 * (issued - c - 1)})")
        a("s_barrier")
        while issued < min(c + 4, 8):
            dma(issued)
            issued += 1
    a.label("K1_END")
    a("s_endpgm")
    return name, 100, 40


def gen_k2(a):
    name = "attn_kernel"
    kernel_head(a, name)
    SWS = 12
    MK = 16
    a("s_cmp_ge_u32 s2, 256")
    a("s_cbranch_scc1 K2_END")
    a.diag_begin()
    a("s_load_dwordx2 s[8:9], s[0:1], 40")
    a("s_load_dwordx2 s[10:11], s[0:1], 16")
    a("v_lshrrev_b32 v2, 6, v0")
    a("v_and_b32 v1, 63, v0")
    a("s_and_b32 s50, s2, 7")
    a("s_lshl_b32 s50, s50, 2")
    a("s_bfe_u32 s51, s2, 0x20003")
    a("s_add_u32 s50, s50, s51")
    a("v_readfirstlane_b32 s52, v2")
    a("s_lshr_b32 s51, s2, 5")
    a("v_and_b32 v3, 31, v1")
    a("v_lshrrev_b32 v4, 5, v1")
    a("v_lshlrev_b32 v5, 5, v3")
    a("v_lshl_add_u32 v5, v4, 4, v5")
    a("v_lshlrev_b32 v2, 4, v1")
    a(f"s_mul_i32 s53, s50, {HS}")
    a("s_lshl_b32 s56, s51, 3")
    a("s_add_u32 s51, s56, s52")
    a("s_lshl_b32 s54, s51, 10")
    a("s_add_u32 s54, s54, s53")
    a("s_lshl_b32 s57, s52, 1")
    a("s_add_u32 s58, s56, s57")
    a("s_sub_i32 s58, s58, 8")
    a("s_add_i32 s59, s58, 1")
    a("s_max_i32 s58, s58, 0")
    a("s_max_i32 s59, s59, 0")
    a("s_lshl_b32 s58, s58, 10")
    a("s_lshl_b32 s59, s59, 10")
    a("s_add_u32 s58, s58, s53")
    a("s_add_u32 s59, s59, s53")
    a("s_lshl_b32 s57, s57, 10")
    a("s_lshl_b32 s60, s52, 10")
    a("v_add_u32 v6, s60, v5")
    a("s_waitcnt lgkmcnt(0)")
    srd(a, SWS, 8, WS_BYTES)
    QF, MPK, AC, OA, BIAS, PK = 8, 12, 20, 36, 52, 68
    SBUF = [132, 148, 164]
    KF = 180
    PA, PBb, PC = 216, 224, 232
    for k, (sg, ws, lo) in enumerate(((58, WS_K, 0), (59, WS_K, 1024), (58, WS_V, 16384), (59, WS_V, 17408))):
        a(f"s_add_u32 s61, s{sg}, {ws}")
        a(f"s_add_u32 m0, s57, {lo}")
        a("s_nop 0")
        a(f"buffer_load_dwordx4 v2, s[{SWS}:{SWS + 3}], s61 offen lds")
        if k == 1:
            a(f"buffer_load_dwordx4 {vr(QF, 4)}, v5, s[{SWS}:{SWS + 3}], s54 offen")
    a("s_lshl_b32 s55, s51, 5")
    a("s_add_u32 s55, s55, s50")
    a("s_lshl_b32 s55, s55, 10")
    a(f"s_add_u32 s55, s55, {WS_O}")
    if TOUCH:
        a(f"buffer_load_dword v251, v5, s[{SWS}:{SWS + 3}], s55 offen")
    srd(a, 64, 10, 512 * 512 * 2)
    a("s_lshr_b32 s68, s2, 3")
    a("s_lshl_b32 s68, s68, 4")
    a("s_lshl_b32 s69, s52, 1")
    a("s_add_u32 s68, s68, s69")
    a("s_lshl_b32 s68, s68, 10")
    a("s_and_b32 s69, s2, 1")
    a("s_lshl_b32 s69, s69, 9")
    a("s_add_u32 s68, s68, s69")
    a("v_lshlrev_b32 v7, 4, v3")
    a("v_lshl_add_u32 v7, v4, 10, v7")
    if WOPF:
        a("buffer_load_dwordx4 v[252:255], v7, s[64:67], s68 offen")
    a("v_lshrrev_b32 v7, 3, v3")
    a("v_lshlrev_b32 v7, 1, v7")
    a("v_bfe_u32 v2, v3, 1, 1")
    a("v_add_u32 v7, v7, v2")
    a("v_bfe_u32 v2, v3, 2, 1")
    a("v_xor_b32 v2, v2, v4")
    a("v_lshl_add_u32 v7, v2, 6, v7")
    a("v_and_b32 v2, 1, v3")
    a("v_lshlrev_b32 v2, 4, v2")
    a(f"v_mov_b32 v{BIAS}, 0x3eb9")
    a(f"v_mov_b32 v{BIAS + 1}, 0xba2c")
    a(f"v_lshlrev_b32 v{BIAS}, v2, v{BIAS}")
    a(f"v_lshlrev_b32 v{BIAS + 1}, v2, v{BIAS + 1}")
    for t in range(8):
        a(f"v_cmp_eq_u32 s[{MK + 2 * t}:{MK + 2 * t + 1}], {t}, v7")
    a("s_nop 1")
    for t in range(8):
        a(f"v_cndmask_b32 v{AC + t}, 0, v{BIAS}, s[{MK + 2 * t}:{MK + 2 * t + 1}]")
        a(f"v_cndmask_b32 v{AC + 8 + t}, 0, v{BIAS + 1}, s[{MK + 2 * t}:{MK + 2 * t + 1}]")
    a("v_lshlrev_b32 v7, 2, v4")
    a("v_sub_u32 v7, v3, v7")
    for r in range(16):
        c = 8 * (r // 4) + (r % 4)
        a(f"v_cmp_le_i32 s[{MK + 2 * r}:{MK + 2 * r + 1}], {c}, v7")
    a("v_mov_b32 v3, 0xffff")
    a("v_mov_b32 v7, 0xffff0000")
    a("s_nop 1")
    for j in range(8):
        a(f"v_cndmask_b32 v{MPK + j}, 0, v3, s[{MK + 4 * j}:{MK + 4 * j + 1}]")
        a(f"v_cndmask_b32 v{PA + j}, 0, v7, s[{MK + 4 * j + 2}:{MK + 4 * j + 3}]")
    for j in range(8):
        a(f"v_or_b32 v{MPK + j}, v{MPK + j}, v{PA + j}")
    for r in range(16):
        a(f"v_mov_b32 v{OA + r}, 0")
    a("v_mov_b32 v3, 0xff800000")
    a("v_mov_b32 v7, 0xff800000")
    a("v_mov_b32 v4, 0x3f803f80")
    a.stamp()
    a(f"s_waitcnt vmcnt({2 + WOPF + TOUCH})")
    a("s_barrier")
    a.stamp()
    if PRIO == 1:
        a("s_cmp_lt_u32 s52, 4")
        a("s_cbranch_scc1 K2_P1")
        a("s_setprio 1")
        a.label("K2_P1")
    if PRIO in (2, 3):
        a("s_setprio 1")
        a("s_cmp_ge_u32 s52, 4")
        a("s_cbranch_scc1 K2_P1")
        a("s_setprio 2")
        a.label("K2_P1")
    korder = [0, 8, 1, 2, 3, 4, 5, 6, 7]
    for i in korder:
        a(f"ds_read_b128 {vr(KF + 4 * i, 4)}, v6 offset:{i * 1024}")

    def sbuf(i):
        if i == 0:
            return SBUF[0]
        if i == 8:
            return SBUF[1]
        return [SBUF[2], SBUF[0], SBUF[1]][(i - 1) % 3]

    def smfma(n):
        i = korder[n]
        return [f"s_waitcnt lgkmcnt({8 - n})",
                f"v_mfma_f32_32x32x16_bf16 {vr(sbuf(i), 16)}, {vr(KF + 4 * i, 4)}, {vr(QF, 4)}, 0"]

    vorder = [8, 0, 1, 2, 3, 4, 5, 6, 7]

    def vread(ns):
        o = ["s_mov_b32 exec_lo, 0xffff", "s_mov_b32 exec_hi, 0xffff"]
        for n in ns:
            i = vorder[n]
            b = KF + 8 * (n % 4)
            o += [f"ds_read_b128 {vr(b + 4 * u, 4)}, v6 offset:{16384 + i * 1024 + u * 512}" for u in range(2)]
        o.append("s_mov_b64 exec, -1")
        return o

    def emit_inter(valu, extra, start=1, step=None):
        n = len(extra)
        if step is None:
            step = max(1, (len(valu) - start) // max(n, 1))
        k = 0
        for idx, l in enumerate(valu):
            a(l)
            if k < n and idx >= start and (idx - start) % step == 0:
                for x in extra[k]:
                    a(x)
                k += 1
        while k < n:
            for x in extra[k]:
                a(x)
            k += 1

    def proc(src, slot):
        o = []
        for q in range(8):
            m = (3, 7)[q & 1]
            o.append(f"v_max3_f32 v{m}, v{m}, v{src + 2 * q}, v{src + 2 * q + 1}")
            o.append(f"v_cvt_pk_bf16_f32 v{PK + 8 * slot + q}, v{src + 2 * q}, v{src + 2 * q + 1}")
        return o

    for n in range(3):
        for l in smfma(n):
            a(l)
    a("s_nop 7")
    a("s_nop 1")
    a("s_cmp_ge_u32 s51, 8")
    a("s_cbranch_scc1 K2_HAVE0")
    for r in range(16):
        a(f"v_mov_b32 v{SBUF[0] + r}, 0xf14a0000")
    a.label("K2_HAVE0")
    for r in range(16):
        a(f"v_cndmask_b32 v{SBUF[1] + r}, v{SBUF[0] + r}, v{SBUF[1] + r}, s[{MK + 2 * r}:{MK + 2 * r + 1}]")
    for l in smfma(3):
        a(l)
    for l in proc(SBUF[1], 0):
        a(l)
    for i in range(1, 8):
        if i + 3 < 9:
            for l in smfma(i + 3):
                a(l)
        if i == 5:
            for r in range(16):
                a(f"v_mov_b32 v{KF + r}, v4")
            a(f"s_waitcnt vmcnt({WOPF + TOUCH})")
            a("s_barrier")
            for l in vread([0, 1]):
                a(l)
        if i == 6:
            for r in range(16):
                a(f"v_mov_b32 v{KF + 16 + r}, v4")
            for l in vread([2, 3]):
                a(l)
        a(f"s_cmp_ge_u32 s51, {8 - i}")
        a(f"s_cbranch_scc1 K2_T{i}_OK")
        for q in range(8):
            a(f"v_mov_b32 v{PK + 8 * i + q}, 0xf14af14a")
        a("s_nop 3")
        a(f"s_branch K2_T{i}_DONE")
        a.label(f"K2_T{i}_OK")
        for l in proc(sbuf(i), i):
            a(l)
        a.label(f"K2_T{i}_DONE")
    a.stamp()
    if PRIO == 2:
        a("s_cmp_ge_u32 s52, 4")
        a("s_cbranch_scc1 K2_P2")
        a("s_setprio 0")
        a.label("K2_P2")
    if PRIO == 3:
        a("s_setprio 0")
    a("v_max_f32 v3, v3, v7")
    a("v_mov_b32 v7, v3")
    a("s_nop 1")
    a("v_permlane32_swap_b32 v3, v7")
    a("s_nop 1")
    a("v_max_f32 v3, v3, v7")
    a("v_cvt_pk_bf16_f32 v3, 0, v3")
    a("v_mul_f32 v3, 0xbeb8aa00, v3")
    for r in range(16):
        a(f"v_mov_b32 v{BIAS + r}, v3")
    DB = [SBUF[0], SBUF[1]]

    def scale(i):
        d = DB[i % 2]
        p = PK + 8 * i
        return [[f"v_mfma_f32_32x32x16_bf16 {vr(d, 16)}, {vr(AC, 4)}, {vr(p, 4)}, {vr(BIAS, 16)}"],
                [f"v_mfma_f32_32x32x16_bf16 {vr(d, 16)}, {vr(AC + 4, 4)}, {vr(p + 4, 4)}, {vr(d, 16)}"],
                [f"v_mfma_f32_32x32x16_bf16 {vr(d, 16)}, {vr(AC + 8, 4)}, {vr(p, 4)}, {vr(d, 16)}"],
                [f"v_mfma_f32_32x32x16_bf16 {vr(d, 16)}, {vr(AC + 12, 4)}, {vr(p + 4, 4)}, {vr(d, 16)}"]]

    def expo(i, pdst):
        d = DB[i % 2]
        o = [f"v_exp_f32 v{d + r}, v{d + r}" for r in range(16)]
        o.append("s_nop 0")
        o += [f"v_cvt_pk_bf16_f32 v{pdst + q}, v{d + 2 * q}, v{d + 2 * q + 1}" for q in range(8)]
        return o

    def pv(n, psrc):
        b = KF + 8 * (n % 4)
        return [[f"v_mfma_f32_32x32x16_bf16 {vr(OA, 16)}, {vr(b + 4 * u, 4)}, {vr(psrc + 4 * u, 4)}, {vr(OA, 16)}"] for u in range(2)]

    a("s_nop 1")
    for g in scale(0):
        a(g[0])
    a("s_nop 7")
    a("s_nop 3")
    pend = []
    for i in range(8):
        pdst = PA if i % 2 == 0 else PBb
        if i == 0:
            pdst = PA
        elif i == 1:
            pdst = PA
        else:
            pdst = PBb if i % 2 == 0 else PA
        val = expo(i, pdst)
        if i == 0:
            for q in range(8):
                val.append(f"v_and_b32 v{PBb + q}, v{PA + q}, v{MPK + q}")
                val.append(f"v_bfi_b32 v{PC + q}, v{MPK + q}, 0, v{PA + q}")
        extra = (scale(i + 1) if i + 1 < 8 else []) + pend
        emit_inter(val, extra, start=1, step=2 if len(extra) > 6 else 3)
        if i == 0:
            p0, p1 = pv(0, PBb), pv(1, PC)
            pend = [["s_waitcnt lgkmcnt(4)"] + p0[0], p0[1], p1[0], p1[1] + vread([4, 5])]
        else:
            n = i + 1
            issued = min(n + 3, 8)
            p0 = pv(n, pdst)
            pend = [[f"s_waitcnt lgkmcnt({2 * (issued - n)})"] + p0[0], p0[1] + (vread([n + 4]) if n + 4 <= 8 else [])]
    a("s_nop 1")
    for g in pend:
        for l in g:
            a(l)
    a("s_nop 7")
    a("s_nop 7")
    a(f"v_rcp_f32 v7, v{OA + 8}")
    a("s_nop 0")
    for r in range(8):
        a(f"v_mul_f32 v{OA + r}, v{OA + r}, v7")
    T = SBUF[2]
    for q in range(4):
        a(f"v_cvt_pk_bf16_f32 v{T + q}, v{OA + 2 * q}, v{OA + 2 * q + 1}")
    a(f"buffer_store_dwordx4 {vr(T, 4)}, v5, s[{SWS}:{SWS + 3}], s55 offen {STF}")
    a("s_sub_u32 s63, s52, 7")
    a.diag_end(1, 52 if DIAG != 2 else 63, "K2_END")
    a.label("K2_END")
    a("s_endpgm")
    return name, 256, 80


def gen_k3(a):
    name = "oproj_kernel"
    kernel_head(a, name)
    SW, SWS, SO = 12, 16, 20
    a("s_cmp_ge_u32 s2, 256")
    a("s_cbranch_scc1 K3_END")
    a.diag_begin()
    a("s_load_dwordx4 s[4:7], s[0:1], 16")
    a("s_load_dwordx2 s[8:9], s[0:1], 40")
    a("v_lshrrev_b32 v2, 6, v0")
    a("v_and_b32 v1, 63, v0")
    a("s_and_b32 s25, s2, 1")
    a("s_lshl_b32 s25, s25, 2")
    a("s_bfe_u32 s24, s2, 0x20003")
    a("s_add_u32 s25, s25, s24")
    a("v_readfirstlane_b32 s26, v2")
    a("s_bfe_u32 s24, s2, 0x20001")
    a("s_lshl_b32 s24, s24, 3")
    a("s_lshr_b32 s27, s2, 5")
    a("s_add_u32 s24, s24, s27")
    a("s_cmp_ge_u32 s26, 4")
    a("s_cbranch_scc1 K3_LOADER")
    a("v_and_b32 v3, 31, v1")
    a("v_lshrrev_b32 v4, 5, v1")
    a("s_and_b32 s27, s26, 1")
    a("s_lshr_b32 s28, s26, 1")
    a("v_lshlrev_b32 v11, 5, v3")
    a("v_lshl_add_u32 v11, v4, 4, v11")
    a("s_lshl_b32 s29, s27, 15")
    a("v_add_u32 v11, s29, v11")
    a("v_lshrrev_b32 v8, 2, v1")
    a("v_and_b32 v8, 3, v8")
    a("v_lshrrev_b32 v9, 1, v8")
    a("v_xor_b32 v9, s28, v9")
    a("v_lshlrev_b32 v9, 6, v9")
    a("v_lshl_add_u32 v8, v4, 2, v8")
    a("v_lshl_add_u32 v8, v8, 7, v9")
    a("v_lshrrev_b32 v9, 4, v1")
    a("v_and_b32 v9, 1, v9")
    a("v_lshl_add_u32 v8, v9, 5, v8")
    a("v_and_b32 v9, 1, v1")
    a("v_lshl_add_u32 v8, v9, 4, v8")
    a("v_lshrrev_b32 v9, 1, v1")
    a("v_and_b32 v9, 1, v9")
    a("v_lshl_add_u32 v8, v9, 3, v8")
    a("v_add_u32 v8, 0x10000, v8")
    a("v_lshlrev_b32 v10, 10, v3")
    a("v_lshl_add_u32 v10, v4, 4, v10")
    a("s_lshl_b32 s31, s24, 16")
    a("s_lshl_b32 s32, s27, 15")
    a("s_add_u32 s31, s31, s32")
    a("s_lshl_b32 s32, s25, 7")
    a("s_add_u32 s31, s31, s32")
    a("s_lshl_b32 s32, s28, 6")
    a("s_add_u32 s31, s31, s32")
    ACC = 16
    FR = 32
    for r in range(16):
        a(f"v_mov_b32 v{ACC + r}, 0")
    a("s_waitcnt lgkmcnt(0)")
    srd(a, SO, 6, 2048 * 512 * 2)
    if TOUCH:
        a(f"buffer_load_dword v17, v10, s[{SO}:{SO + 3}], s31 offen")
        a("s_waitcnt vmcnt(0)")
        a("v_mov_b32 v17, 0")

    def reads(s):
        f = FR + (s % 4) * 8
        a(f"ds_read_b128 {vr(f, 4)}, v11 offset:{s * 1024}")
        a(f"ds_read_b64_tr_b16 {vr(f + 4, 2)}, v8 offset:{s * 2048}")
        a(f"ds_read_b64_tr_b16 {vr(f + 6, 2)}, v8 offset:{s * 2048 + 1024}")

    NPH = 8
    SP = 32 // NPH
    for j in range(NPH):
        a("s_barrier")
        if j in (0, NPH - 1):
            a.stamp()
        pre = min(3, SP)
        for s in range(SP * j, SP * j + pre):
            reads(s)
        for s in range(SP * j, SP * j + SP):
            if s + 3 < SP * j + SP:
                reads(s + 3)
                a("s_waitcnt lgkmcnt(9)")
            else:
                a(f"s_waitcnt lgkmcnt({3 * (SP * j + SP - 1 - s)})")
            f = FR + (s % 4) * 8
            a(f"v_mfma_f32_32x32x16_bf16 {vr(ACC, 16)}, {vr(f + 4, 4)}, {vr(f, 4)}, {vr(ACC, 16)}")
    STG = 131072
    a("s_lshl_b32 s32, s27, 5")
    a("v_add_u32 v12, s32, v3")
    a("v_mul_u32_u24 v12, 144, v12")
    a("v_lshl_add_u32 v12, v4, 4, v12")
    a("s_lshl_b32 s32, s28, 6")
    a(f"s_add_u32 s32, s32, {STG}")
    a("v_add_u32 v12, s32, v12")
    a("v_lshrrev_b32 v13, 3, v1")
    a("s_lshl_b32 s32, s26, 4")
    a("v_add_u32 v13, s32, v13")
    a("v_and_b32 v14, 7, v1")
    a("v_lshlrev_b32 v15, 10, v13")
    a("v_lshl_add_u32 v15, v14, 4, v15")
    a("v_mul_u32_u24 v13, 144, v13")
    a("v_lshl_add_u32 v13, v14, 4, v13")
    a(f"v_add_u32 v13, {STG}, v13")
    a("s_lshl_b32 s31, s24, 16")
    a("s_lshl_b32 s32, s25, 7")
    a("s_add_u32 s31, s31, s32")
    T = 32
    for u in range(2):
        for q in range(4):
            a(f"v_cvt_pk_bf16_f32 v{T + 4 * u + q}, v{ACC + 8 * u + 2 * q}, v{ACC + 8 * u + 2 * q + 1}")
        a(f"ds_write_b128 v12, {vr(T + 4 * u, 4)} offset:{u * 32}")
    a("s_waitcnt lgkmcnt(0)")
    a("s_barrier")
    for u in range(2):
        a(f"ds_read_b128 {vr(T + 8 + 4 * u, 4)}, v13 offset:{u * 8 * 144}")
    for u in range(2):
        a(f"s_waitcnt lgkmcnt({1 - u})")
        a(f"buffer_store_dwordx4 {vr(T + 8 + 4 * u, 4)}, v15, s[{SO}:{SO + 3}], s31 offen offset:0 {STF3}" if u == 0 else
          f"buffer_store_dwordx4 {vr(T + 8 + 4 * u, 4)}, v16, s[{SO}:{SO + 3}], s31 offen {STF3}")
        if u == 0:
            a("v_add_u32 v16, 8192, v15")
    a.diag_end(2, 26, "K3_END")
    a("s_endpgm")
    a.label("K3_LOADER")
    a("s_sub_u32 s26, s26, 4")
    a("v_lshlrev_b32 v5, 4, v1")
    a("v_lshrrev_b32 v6, 4, v1")
    a("v_and_b32 v6, 1, v6")
    a("v_lshlrev_b32 v6, 2, v6")
    a("v_and_b32 v7, 7, v1")
    a("v_xor_b32 v6, v6, v7")
    a("v_lshlrev_b32 v6, 4, v6")
    a("v_lshrrev_b32 v7, 3, v1")
    a("v_lshl_add_u32 v6, v7, 10, v6")
    a("s_and_b32 s27, s26, 1")
    a("s_lshr_b32 s28, s26, 1")
    a("s_lshl_b32 s33, s24, 16")
    a("s_lshl_b32 s34, s27, 15")
    a("s_add_u32 s33, s33, s34")
    a("s_lshl_b32 s35, s28, 11")
    a("s_add_u32 s33, s33, s35")
    a(f"s_add_u32 s33, s33, {WS_O}")
    a("s_add_u32 s34, s34, s35")
    a("s_lshl_b32 s35, s26, 14")
    a("s_lshl_b32 s36, s25, 7")
    a("s_add_u32 s35, s35, s36")
    a("s_lshl_b32 s36, s26, 11")
    a("s_add_u32 s36, s36, 0x10000")
    a("s_waitcnt lgkmcnt(0)")
    srd(a, SW, 4, 512 * 512 * 2)
    srd(a, SWS, 8, WS_BYTES)
    a("s_lshr_b32 s39, s2, 3")

    def dma3(j):
        a(f"s_add_u32 s40, s39, {j}")
        a("s_and_b32 s40, s40, 7")
        a("s_lshl_b32 s41, s40, 12")
        a("s_add_u32 s41, s41, s33")
        a("s_lshl_b32 s42, s40, 16")
        a("s_add_u32 s42, s42, s35")
        for i in range(2):
            a(f"s_add_u32 s37, s41, {i * 1024}")
            a(f"s_add_u32 m0, s34, {j * 4096 + i * 1024}")
            a("s_nop 0")
            a(f"buffer_load_dwordx4 v5, s[{SWS}:{SWS + 3}], s37 offen lds")
        for i in range(2):
            a(f"s_add_u32 s37, s42, {i * 8192}")
            a(f"s_add_u32 m0, s36, {j * 8192 + i * 1024}")
            a("s_nop 0")
            a(f"buffer_load_dwordx4 v6, s[{SW}:{SW + 3}], s37 offen lds")

    LA3 = int(os.environ.get("LA3", "4"))
    for j in range(LA3):
        dma3(j)
    for j in range(NPH):
        issued = min(j + LA3, NPH)
        a(f"s_waitcnt vmcnt({4 * (issued - j - 1)})")
        a("s_barrier")
        if j + LA3 < NPH:
            dma3(j + LA3)
    a.label("K3_END")
    a("s_endpgm")
    return name, 64, 48


def main():
    a = Asm()
    hdr = open("standalone__sliding_block__prompt.s.ref").read().split("\n")
    for line in hdr:
        if line.startswith("; @launch") or not line.startswith(";"):
            break
        a.raw(line)
    a.raw("; @launch kernel=qkv_kernel grid=(256,1,1) block=(512,1,1) lds=131072")
    a.raw("; @launch kernel=attn_kernel grid=(256,1,1) block=(512,1,1) lds=33280")
    a.raw("; @launch kernel=oproj_kernel grid=(256,1,1) block=(512,1,1) lds=140288")
    a.raw('.amdgcn_target "amdgcn-amd-amdhsa--gfx950"')
    a.raw(".text")
    ks = [gen_k1(a), gen_k2(a), gen_k3(a)]
    a.raw('.section .rodata,"a"')
    for name, v, s in ks:
        kd(a, name, v, s)
    txt = a.text()
    if int(os.environ.get("LOADER_FIRST", "1")):
        for k, end in (("K1", "K1_END"), ("K3", "K3_END")):
            br = f"    s_cmp_ge_u32 s26, 4\n    s_cbranch_scc1 {k}_LOADER\n"
            i0 = txt.index(br)
            i1 = txt.index(f"{k}_LOADER:\n")
            i2 = txt.index(f"{end}:\n")
            comp = txt[i0 + len(br):i1]
            load = txt[i1 + len(f"{k}_LOADER:\n"):i2]
            txt = (txt[:i0] + f"    s_cmp_lt_u32 s26, 4\n    s_cbranch_scc1 {k}_COMPUTE\n" + load + "    s_endpgm\n"
                   + f"{k}_COMPUTE:\n" + comp + txt[i2:])
    open(OUT, "w").write(txt)


main()
```

```python
import sys

OUT = sys.argv[1] if len(sys.argv) > 1 else "standalone__sliding_block__prompt.s"

MB = 1 << 20
WS_Q, WS_K, WS_V, WS_O = 0, 65536, 131072, 6 * MB
HS = 196608
WS_BYTES = 8 * MB


import os
DIAG = int(os.environ.get("DIAG", "0"))
STF = os.environ.get("STF", "sc1")
STF3 = os.environ.get("STF3", "sc1")
TOUCH = int(os.environ.get("TOUCH", "0"))
WOPF = int(os.environ.get("WOPF", "1"))
PRIO = int(os.environ.get("PRIO", "0"))


class Asm:
    def __init__(self):
        self.lines = []
        self.nst = 0

    def stamp(self):
        if DIAG:
            i = self.nst
            self.nst += 1
            self(f"s_memtime s[{82 + 2 * i}:{83 + 2 * i}]")

    def diag_begin(self):
        if DIAG:
            self.nst = 0
            self("s_memrealtime s[100:101]")
            self.stamp()

    def diag_end(self, kidx, wave_sreg, lab):
        if not DIAG:
            return
        self.stamp()
        self("s_waitcnt vmcnt(0) lgkmcnt(0)")
        self.stamp()
        self("s_memrealtime s[98:99]")
        self("s_load_dwordx2 s[76:77], s[0:1], 40")
        self("s_waitcnt lgkmcnt(0)")
        self(f"s_cmp_lg_u32 s{wave_sreg}, 0")
        self(f"s_cbranch_scc1 {lab}")
        self("s_and_b32 s77, s77, 0xffff")
        self("s_mov_b32 s78, 0x2000000")
        self("s_mov_b32 s79, 0x00020000")
        self("s_lshl_b32 s80, s2, 7")
        self(f"s_add_u32 s80, s80, {16 * MB + kidx * 65536}")
        self("v_mov_b32 v1, 0")
        self("v_mov_b32 v2, s100")
        self("buffer_store_dword v2, v1, s[76:79], s80 offen")
        self("v_mov_b32 v2, s98")
        self("buffer_store_dword v2, v1, s[76:79], s80 offen offset:4")
        for i in range(self.nst):
            self(f"s_sub_u32 s81, s{82 + 2 * i}, s82")
            self("v_mov_b32 v2, s81")
            self(f"buffer_store_dword v2, v1, s[76:79], s80 offen offset:{8 + 4 * i}")
        if DIAG == 3 and kidx == 2:
            self("s_cmp_lg_u32 s2, 5")
            self(f"s_cbranch_scc1 {lab}")
            self(f"s_mov_b32 s80, {16 * MB + 5 * 128}")
            self("buffer_load_dwordx2 v[4:5], v1, s[76:79], s80 offen")
            self(f"s_mov_b32 s80, {16 * MB + 65536 + 5 * 128}")
            self("buffer_load_dwordx2 v[6:7], v1, s[76:79], s80 offen")
            self("s_load_dwordx2 s[72:73], s[0:1], 32")
            self("s_waitcnt vmcnt(0) lgkmcnt(0)")
            self("s_sub_u32 s72, s72, 0")
            self("s_subb_u32 s73, s73, 0")
            self("s_and_b32 s73, s73, 0xffff")
            self("s_mov_b32 s74, 64")
            self("s_mov_b32 s75, 0x00020000")
            self("v_mov_b32 v8, s100")
            self("v_mov_b32 v9, s98")
            self("v_sub_u32 v5, v5, v4")
            self("v_sub_u32 v6, v6, v4")
            self("v_sub_u32 v7, v7, v4")
            self("v_sub_u32 v8, v8, v4")
            self("v_sub_u32 v9, v9, v4")
            self("buffer_store_dwordx4 v[4:7], v1, s[72:75], 0 offen")
            self("buffer_store_dwordx2 v[8:9], v1, s[72:75], 0 offen offset:16")

    def __call__(self, s):
        self.lines.append("    " + s)

    def label(self, l):
        self.lines.append(l + ":")

    def raw(self, s):
        self.lines.append(s)

    def text(self):
        return "\n".join(self.lines) + "\n"


def vr(base, n):
    return f"v[{base}:{base + n - 1}]"


def srd(a, d, ptr_lo, nbytes):
    a(f"s_mov_b32 s{d}, s{ptr_lo}")
    a(f"s_and_b32 s{d + 1}, s{ptr_lo + 1}, 0xffff")
    a(f"s_mov_b32 s{d + 2}, {nbytes:#x}")
    a(f"s_mov_b32 s{d + 3}, 0x00020000")


def kernel_head(a, name):
    a.raw(f".globl {name}")
    a.raw(".p2align 8")
    a.raw(f".type {name},@function")
    a.label(name)


def kd(a, name, vgpr, sgpr):
    acc = (vgpr + 3) // 4 * 4
    a.raw(".p2align 6")
    a.raw(f".amdhsa_kernel {name}")
    a.raw(f"  .amdhsa_next_free_vgpr {vgpr}")
    a.raw(f"  .amdhsa_next_free_sgpr {102 if DIAG else sgpr}")
    a.raw(f"  .amdhsa_accum_offset {acc}")
    a.raw("  .amdhsa_group_segment_fixed_size 0")
    a.raw("  .amdhsa_kernarg_size 48")
    a.raw("  .amdhsa_user_sgpr_count 2")
    a.raw("  .amdhsa_user_sgpr_kernarg_segment_ptr 1")
    a.raw("  .amdhsa_system_sgpr_workgroup_id_x 1")
    a.raw(".end_amdhsa_kernel")


def gen_k1(a):
    name = "qkv_kernel"
    kernel_head(a, name)
    SX, SW, SWS = 12, 16, 20
    a("s_cmp_ge_u32 s2, 256")
    a("s_cbranch_scc1 K1_END")
    a.diag_begin()
    a("s_load_dwordx4 s[4:7], s[0:1], 0")
    a("s_load_dwordx2 s[8:9], s[0:1], 40")
    a("v_lshrrev_b32 v2, 6, v0")
    a("v_and_b32 v1, 63, v0")
    MAP1 = os.environ.get("MAP1", "2x4")
    if MAP1 == "1x8":
        a("s_and_b32 s24, s2, 7")
        a("s_lshr_b32 s25, s2, 3")
        a("v_readfirstlane_b32 s26, v2")
        a("s_nop 0")
    elif MAP1 == "4x2":
        a("s_and_b32 s24, s2, 1")
        a("s_lshl_b32 s24, s24, 2")
        a("s_bfe_u32 s25, s2, 0x20003")
        a("s_add_u32 s24, s24, s25")
        a("v_readfirstlane_b32 s26, v2")
        a("s_bfe_u32 s25, s2, 0x20001")
        a("s_lshl_b32 s25, s25, 3")
        a("s_lshr_b32 s27, s2, 5")
        a("s_add_u32 s25, s25, s27")
    elif MAP1 == "2x4":
        a("s_and_b32 s24, s2, 3")
        a("s_lshl_b32 s24, s24, 1")
        a("s_bfe_u32 s25, s2, 0x10003")
        a("s_add_u32 s24, s24, s25")
        a("v_readfirstlane_b32 s26, v2")
        a("s_bfe_u32 s25, s2, 0x10002")
        a("s_lshl_b32 s25, s25, 4")
        a("s_lshr_b32 s27, s2, 4")
        a("s_add_u32 s25, s25, s27")
    a("s_cmp_ge_u32 s26, 4")
    a("s_cbranch_scc1 K1_LOADER")
    a("v_and_b32 v3, 31, v1")
    a("v_lshrrev_b32 v4, 5, v1")
    a("s_and_b32 s27, s26, 1")
    a("s_lshr_b32 s28, s26, 1")
    a("s_lshl_b32 s29, s27, 5")
    a("v_add_u32 v9, s29, v3")
    a("v_lshrrev_b32 v10, 1, v9")
    a("v_and_b32 v10, 7, v10")
    a("v_lshlrev_b32 v9, 7, v9")
    for s in range(4):
        a(f"v_add_u32 v11, {2 * s}, v4")
        a("v_xor_b32 v11, v11, v10")
        a(f"v_lshl_add_u32 v{12 + s}, v11, 4, v9")
    a("v_lshrrev_b32 v9, 2, v1")
    a("v_and_b32 v9, 3, v9")
    a("v_lshrrev_b32 v10, 1, v9")
    a("v_xor_b32 v10, s28, v10")
    a("v_lshlrev_b32 v10, 6, v10")
    a("v_lshl_add_u32 v9, v4, 3, v9")
    a("v_lshl_add_u32 v10, v9, 7, v10")
    a("v_lshrrev_b32 v9, 4, v1")
    a("v_and_b32 v9, 1, v9")
    a("v_lshl_add_u32 v10, v9, 5, v10")
    a("v_and_b32 v9, 3, v1")
    a("v_lshl_add_u32 v10, v9, 3, v10")
    a("v_add_u32 v10, 0x8000, v10")
    a("v_add_u32 v11, 0xc000, v10")
    a("v_lshlrev_b32 v5, 5, v3")
    a("v_lshl_add_u32 v5, v4, 4, v5")
    a("v_and_b32 v6, 15, v1")
    a("v_lshlrev_b32 v6, 5, v6")
    a("v_lshl_add_u32 v6, v4, 4, v6")
    a("v_lshrrev_b32 v9, 4, v3")
    a(f"v_mul_u32_u24 v9, {HS}, v9")
    a("v_add_u32 v6, v9, v6")
    ACC = 16
    FR = 64
    for r in range(48):
        a(f"v_mov_b32 v{ACC + r}, 0")
    a(f"s_mul_i32 s31, s24, {4 * HS}")
    a(f"s_mul_i32 s32, s28, {2 * HS}")
    a("s_add_u32 s31, s31, s32")
    a("s_lshl_b32 s32, s25, 11")
    a("s_add_u32 s31, s31, s32")
    a("s_lshl_b32 s32, s27, 10")
    a("s_add_u32 s31, s31, s32")
    a(f"s_add_u32 s32, s31, {HS}")
    a(f"s_add_u32 s33, s31, {WS_K}")
    a(f"s_add_u32 s34, s33, {HS}")
    a(f"s_add_u32 s35, s31, {WS_V}")
    a("s_waitcnt lgkmcnt(0)")
    srd(a, SWS, 8, WS_BYTES)
    if TOUCH:
        for so in (31, 34):
            a(f"buffer_load_dword v96, v5, s[{SWS}:{SWS + 3}], s{so} offen")
        a(f"buffer_load_dword v96, v6, s[{SWS}:{SWS + 3}], s35 offen")
        a("s_lshl_b32 s36, s2, 13")
        a(f"s_add_u32 s36, s36, {WS_O}")
        a(f"buffer_load_dword v96, v5, s[{SWS}:{SWS + 3}], s36 offen")

    def reads(c, s):
        b = c % 4
        f = FR + ((4 * c + s) % 2) * 16
        a(f"ds_read_b128 {vr(f, 4)}, v{12 + s} offset:{b * 8192}")
        breg = 10 if b < 2 else 11
        boff = (b % 2) * 24576 + s * 2048
        for p in range(3):
            a(f"ds_read_b64_tr_b16 {vr(f + 4 + 4 * p, 2)}, v{breg} offset:{boff + p * 8192}")
            a(f"ds_read_b64_tr_b16 {vr(f + 6 + 4 * p, 2)}, v{breg} offset:{boff + p * 8192 + 512}")

    for c in range(8):
        a("s_barrier")
        if c in (0, 1, 4, 7):
            a.stamp()
        reads(c, 0)
        for s in range(4):
            if s + 1 < 4:
                reads(c, s + 1)
                a("s_waitcnt lgkmcnt(7)")
            else:
                a("s_waitcnt lgkmcnt(0)")
            f = FR + ((4 * c + s) % 2) * 16
            af = vr(f, 4)
            a(f"v_mfma_f32_32x32x16_bf16 {vr(ACC, 16)}, {vr(f + 4, 4)}, {af}, {vr(ACC, 16)}")
            a(f"v_mfma_f32_32x32x16_bf16 {vr(ACC + 16, 16)}, {vr(f + 8, 4)}, {af}, {vr(ACC + 16, 16)}")
            a(f"v_mfma_f32_32x32x16_bf16 {vr(ACC + 32, 16)}, {af}, {vr(f + 12, 4)}, {vr(ACC + 32, 16)}")
    a("s_nop 7")
    a("s_nop 3")
    T = 64
    for tile, soffs in ((0, (31, 32)), (1, (33, 34))):
        for hd in range(2):
            base = ACC + 16 * tile + 8 * hd
            t = T + 4 * (2 * tile + hd)
            for q in range(4):
                a(f"v_cvt_pk_bf16_f32 v{t + q}, v{base + 2 * q}, v{base + 2 * q + 1}")
            a(f"buffer_store_dwordx4 {vr(t, 4)}, v5, s[{SWS}:{SWS + 3}], s{soffs[hd]} offen {STF}")
    for u in range(2):
        base = ACC + 32 + 8 * u
        t = T + 16 + 4 * u
        for q in range(4):
            a(f"v_cvt_pk_bf16_f32 v{t + q}, v{base + 2 * q}, v{base + 2 * q + 1}")
        a(f"buffer_store_dwordx4 {vr(t, 4)}, v6, s[{SWS}:{SWS + 3}], s35 offen offset:{u * 512} {STF}")
    a.diag_end(0, 26, "K1_END")
    a("s_endpgm")
    a.label("K1_LOADER")
    a("s_sub_u32 s26, s26, 4")
    a("v_lshrrev_b32 v5, 3, v1")
    a("v_and_b32 v6, 7, v1")
    a("s_and_b32 s27, s26, 1")
    a("v_lshrrev_b32 v7, 4, v1")
    a("s_lshl_b32 s29, s27, 2")
    a("v_add_u32 v7, s29, v7")
    a("v_xor_b32 v7, v7, v6")
    a("v_lshlrev_b32 v7, 4, v7")
    a("v_lshl_add_u32 v7, v5, 10, v7")
    a("v_lshrrev_b32 v8, 4, v1")
    a("v_and_b32 v8, 1, v8")
    a("v_lshlrev_b32 v8, 2, v8")
    a("v_xor_b32 v8, v8, v6")
    a("v_lshlrev_b32 v8, 4, v8")
    a("v_mul_u32_u24 v9, 3072, v5")
    a("v_add_u32 v8, v8, v9")
    a("s_lshl_b32 s29, s25, 16")
    a("s_lshl_b32 s30, s26, 13")
    a("s_add_u32 s29, s29, s30")
    a("s_lshl_b32 s30, s26, 10")
    a("s_mul_i32 s31, s26, 49152")
    a("s_lshl_b32 s32, s24, 7")
    a("s_add_u32 s31, s31, s32")
    a("s_lshl_b32 s32, s26, 11")
    a("s_add_u32 s32, s32, 0x8000")
    a("s_waitcnt lgkmcnt(0)")
    srd(a, SX, 4, 2048 * 512 * 2)
    srd(a, SW, 6, 512 * 1536 * 2)

    a("s_lshr_b32 s39, s2, 3")

    def dma(c):
        b = c % 4
        a(f"s_add_u32 s36, s39, {c}")
        a("s_and_b32 s36, s36, 7")
        a("s_lshl_b32 s37, s36, 7")
        a("s_add_u32 s37, s37, s29")
        a("s_mul_i32 s38, s36, 196608")
        a("s_add_u32 s38, s38, s31")
        for i2 in range(2):
            a(f"s_add_u32 s33, s37, {i2 * 32768}")
            a(f"s_add_u32 m0, s30, {b * 8192 + i2 * 4096}")
            a("s_nop 0")
            a(f"buffer_load_dwordx4 v7, s[{SX}:{SX + 3}], s33 offen lds")
        for p in range(3):
            for i2 in range(2):
                a(f"s_add_u32 s33, s38, {i2 * 8 * 3072 + p * 1024}")
                a(f"s_add_u32 m0, s32, {b * 24576 + p * 8192 + i2 * 1024}")
                a("s_nop 0")
                a(f"buffer_load_dwordx4 v8, s[{SW}:{SW + 3}], s33 offen lds")

    dma(0)
    dma(1)
    issued = 2
    for c in range(8):
        a(f"s_waitcnt vmcnt({8 * (issued - c - 1)})")
        a("s_barrier")
        while issued < min(c + 4, 8):
            dma(issued)
            issued += 1
    a.label("K1_END")
    a("s_endpgm")
    return name, 100, 40


def gen_k2(a):
    name = "attn_kernel"
    kernel_head(a, name)
    SWS = 12
    MK = 16
    a("s_cmp_ge_u32 s2, 256")
    a("s_cbranch_scc1 K2_END")
    a.diag_begin()
    a("s_load_dwordx2 s[8:9], s[0:1], 40")
    a("s_load_dwordx2 s[10:11], s[0:1], 16")
    a("v_lshrrev_b32 v2, 6, v0")
    a("v_and_b32 v1, 63, v0")
    a("s_and_b32 s50, s2, 7")
    a("s_lshl_b32 s50, s50, 2")
    a("s_bfe_u32 s51, s2, 0x20003")
    a("s_add_u32 s50, s50, s51")
    a("v_readfirstlane_b32 s52, v2")
    a("s_lshr_b32 s51, s2, 5")
    a("v_and_b32 v3, 31, v1")
    a("v_lshrrev_b32 v4, 5, v1")
    a("v_lshlrev_b32 v5, 5, v3")
    a("v_lshl_add_u32 v5, v4, 4, v5")
    a("v_lshlrev_b32 v2, 4, v1")
    a(f"s_mul_i32 s53, s50, {HS}")
    a("s_lshl_b32 s56, s51, 3")
    a("s_add_u32 s51, s56, s52")
    a("s_lshl_b32 s54, s51, 10")
    a("s_add_u32 s54, s54, s53")
    a("s_lshl_b32 s57, s52, 1")
    a("s_add_u32 s58, s56, s57")
    a("s_sub_i32 s58, s58, 8")
    a("s_add_i32 s59, s58, 1")
    a("s_max_i32 s58, s58, 0")
    a("s_max_i32 s59, s59, 0")
    a("s_lshl_b32 s58, s58, 10")
    a("s_lshl_b32 s59, s59, 10")
    a("s_add_u32 s58, s58, s53")
    a("s_add_u32 s59, s59, s53")
    a("s_lshl_b32 s57, s57, 10")
    a("s_lshl_b32 s60, s52, 10")
    a("v_add_u32 v6, s60, v5")
    a("s_waitcnt lgkmcnt(0)")
    srd(a, SWS, 8, WS_BYTES)
    QF, MPK, AC, OA, BIAS, PK = 8, 12, 20, 36, 52, 68
    SBUF = [132, 148, 164]
    KF = 180
    PA, PBb, PC = 216, 224, 232
    for k, (sg, ws, lo) in enumerate(((58, WS_K, 0), (59, WS_K, 1024), (58, WS_V, 16384), (59, WS_V, 17408))):
        a(f"s_add_u32 s61, s{sg}, {ws}")
        a(f"s_add_u32 m0, s57, {lo}")
        a("s_nop 0")
        a(f"buffer_load_dwordx4 v2, s[{SWS}:{SWS + 3}], s61 offen lds")
        if k == 1:
            a(f"buffer_load_dwordx4 {vr(QF, 4)}, v5, s[{SWS}:{SWS + 3}], s54 offen")
    a("s_lshl_b32 s55, s51, 5")
    a("s_add_u32 s55, s55, s50")
    a("s_lshl_b32 s55, s55, 10")
    a(f"s_add_u32 s55, s55, {WS_O}")
    if TOUCH:
        a(f"buffer_load_dword v251, v5, s[{SWS}:{SWS + 3}], s55 offen")
    srd(a, 64, 10, 512 * 512 * 2)
    a("s_lshr_b32 s68, s2, 3")
    a("s_lshl_b32 s68, s68, 4")
    a("s_lshl_b32 s69, s52, 1")
    a("s_add_u32 s68, s68, s69")
    a("s_lshl_b32 s68, s68, 10")
    a("s_and_b32 s69, s2, 1")
    a("s_lshl_b32 s69, s69, 9")
    a("s_add_u32 s68, s68, s69")
    a("v_lshlrev_b32 v7, 4, v3")
    a("v_lshl_add_u32 v7, v4, 10, v7")
    if WOPF:
        a("buffer_load_dwordx4 v[252:255], v7, s[64:67], s68 offen")
    a("v_lshrrev_b32 v7, 3, v3")
    a("v_lshlrev_b32 v7, 1, v7")
    a("v_bfe_u32 v2, v3, 1, 1")
    a("v_add_u32 v7, v7, v2")
    a("v_bfe_u32 v2, v3, 2, 1")
    a("v_xor_b32 v2, v2, v4")
    a("v_lshl_add_u32 v7, v2, 6, v7")
    a("v_and_b32 v2, 1, v3")
    a("v_lshlrev_b32 v2, 4, v2")
    a(f"v_mov_b32 v{BIAS}, 0x3eb9")
    a(f"v_mov_b32 v{BIAS + 1}, 0xba2c")
    a(f"v_lshlrev_b32 v{BIAS}, v2, v{BIAS}")
    a(f"v_lshlrev_b32 v{BIAS + 1}, v2, v{BIAS + 1}")
    for t in range(8):
        a(f"v_cmp_eq_u32 s[{MK + 2 * t}:{MK + 2 * t + 1}], {t}, v7")
    a("s_nop 1")
    for t in range(8):
        a(f"v_cndmask_b32 v{AC + t}, 0, v{BIAS}, s[{MK + 2 * t}:{MK + 2 * t + 1}]")
        a(f"v_cndmask_b32 v{AC + 8 + t}, 0, v{BIAS + 1}, s[{MK + 2 * t}:{MK + 2 * t + 1}]")
    a("v_lshlrev_b32 v7, 2, v4")
    a("v_sub_u32 v7, v3, v7")
    for r in range(16):
        c = 8 * (r // 4) + (r % 4)
        a(f"v_cmp_le_i32 s[{MK + 2 * r}:{MK + 2 * r + 1}], {c}, v7")
    a("v_mov_b32 v3, 0xffff")
    a("v_mov_b32 v7, 0xffff0000")
    a("s_nop 1")
    for j in range(8):
        a(f"v_cndmask_b32 v{MPK + j}, 0, v3, s[{MK + 4 * j}:{MK + 4 * j + 1}]")
        a(f"v_cndmask_b32 v{PA + j}, 0, v7, s[{MK + 4 * j + 2}:{MK + 4 * j + 3}]")
    for j in range(8):
        a(f"v_or_b32 v{MPK + j}, v{MPK + j}, v{PA + j}")
    for r in range(16):
        a(f"v_mov_b32 v{OA + r}, 0")
    a("v_mov_b32 v3, 0xff800000")
    a("v_mov_b32 v7, 0xff800000")
    a("v_mov_b32 v4, 0x3f803f80")
    a.stamp()
    a(f"s_waitcnt vmcnt({2 + WOPF + TOUCH})")
    a("s_barrier")
    a.stamp()
    if PRIO == 1:
        a("s_cmp_lt_u32 s52, 4")
        a("s_cbranch_scc1 K2_P1")
        a("s_setprio 1")
        a.label("K2_P1")
    if PRIO in (2, 3):
        a("s_setprio 1")
        a("s_cmp_ge_u32 s52, 4")
        a("s_cbranch_scc1 K2_P1")
        a("s_setprio 2")
        a.label("K2_P1")
    korder = [0, 8, 1, 2, 3, 4, 5, 6, 7]
    for i in korder:
        a(f"ds_read_b128 {vr(KF + 4 * i, 4)}, v6 offset:{i * 1024}")

    def sbuf(i):
        if i == 0:
            return SBUF[0]
        if i == 8:
            return SBUF[1]
        return [SBUF[2], SBUF[0], SBUF[1]][(i - 1) % 3]

    def smfma(n):
        i = korder[n]
        return [f"s_waitcnt lgkmcnt({8 - n})",
                f"v_mfma_f32_32x32x16_bf16 {vr(sbuf(i), 16)}, {vr(KF + 4 * i, 4)}, {vr(QF, 4)}, 0"]

    vorder = [8, 0, 1, 2, 3, 4, 5, 6, 7]

    def vread(ns):
        o = ["s_mov_b32 exec_lo, 0xffff", "s_mov_b32 exec_hi, 0xffff"]
        for n in ns:
            i = vorder[n]
            b = KF + 8 * (n % 4)
            o += [f"ds_read_b128 {vr(b + 4 * u, 4)}, v6 offset:{16384 + i * 1024 + u * 512}" for u in range(2)]
        o.append("s_mov_b64 exec, -1")
        return o

    def emit_inter(valu, extra, start=1, step=None):
        n = len(extra)
        if step is None:
            step = max(1, (len(valu) - start) // max(n, 1))
        k = 0
        for idx, l in enumerate(valu):
            a(l)
            if k < n and idx >= start and (idx - start) % step == 0:
                for x in extra[k]:
                    a(x)
                k += 1
        while k < n:
            for x in extra[k]:
                a(x)
            k += 1

    def proc(src, slot):
        o = []
        for q in range(8):
            m = (3, 7)[q & 1]
            o.append(f"v_max3_f32 v{m}, v{m}, v{src + 2 * q}, v{src + 2 * q + 1}")
            o.append(f"v_cvt_pk_bf16_f32 v{PK + 8 * slot + q}, v{src + 2 * q}, v{src + 2 * q + 1}")
        return o

    for n in range(3):
        for l in smfma(n):
            a(l)
    a("s_nop 7")
    a("s_nop 1")
    a("s_cmp_ge_u32 s51, 8")
    a("s_cbranch_scc1 K2_HAVE0")
    for r in range(16):
        a(f"v_mov_b32 v{SBUF[0] + r}, 0xf14a0000")
    a.label("K2_HAVE0")
    for r in range(16):
        a(f"v_cndmask_b32 v{SBUF[1] + r}, v{SBUF[0] + r}, v{SBUF[1] + r}, s[{MK + 2 * r}:{MK + 2 * r + 1}]")
    for l in smfma(3):
        a(l)
    for l in proc(SBUF[1], 0):
        a(l)
    for i in range(1, 8):
        if i + 3 < 9:
            for l in smfma(i + 3):
                a(l)
        if i == 5:
            for r in range(16):
                a(f"v_mov_b32 v{KF + r}, v4")
            a(f"s_waitcnt vmcnt({WOPF + TOUCH})")
            a("s_barrier")
            for l in vread([0, 1]):
                a(l)
        if i == 6:
            for r in range(16):
                a(f"v_mov_b32 v{KF + 16 + r}, v4")
            for l in vread([2, 3]):
                a(l)
        a(f"s_cmp_ge_u32 s51, {8 - i}")
        a(f"s_cbranch_scc1 K2_T{i}_OK")
        for q in range(8):
            a(f"v_mov_b32 v{PK + 8 * i + q}, 0xf14af14a")
        a("s_nop 3")
        a(f"s_branch K2_T{i}_DONE")
        a.label(f"K2_T{i}_OK")
        for l in proc(sbuf(i), i):
            a(l)
        a.label(f"K2_T{i}_DONE")
    a.stamp()
    if PRIO == 2:
        a("s_cmp_ge_u32 s52, 4")
        a("s_cbranch_scc1 K2_P2")
        a("s_setprio 0")
        a.label("K2_P2")
    if PRIO == 3:
        a("s_setprio 0")
    a("v_max_f32 v3, v3, v7")
    a("v_mov_b32 v7, v3")
    a("s_nop 1")
    a("v_permlane32_swap_b32 v3, v7")
    a("s_nop 1")
    a("v_max_f32 v3, v3, v7")
    a("v_cvt_pk_bf16_f32 v3, 0, v3")
    a("v_mul_f32 v3, 0xbeb8aa00, v3")
    for r in range(16):
        a(f"v_mov_b32 v{BIAS + r}, v3")
    DB = [SBUF[0], SBUF[1]]

    def scale(i):
        d = DB[i % 2]
        p = PK + 8 * i
        return [[f"v_mfma_f32_32x32x16_bf16 {vr(d, 16)}, {vr(AC, 4)}, {vr(p, 4)}, {vr(BIAS, 16)}"],
                [f"v_mfma_f32_32x32x16_bf16 {vr(d, 16)}, {vr(AC + 4, 4)}, {vr(p + 4, 4)}, {vr(d, 16)}"],
                [f"v_mfma_f32_32x32x16_bf16 {vr(d, 16)}, {vr(AC + 8, 4)}, {vr(p, 4)}, {vr(d, 16)}"],
                [f"v_mfma_f32_32x32x16_bf16 {vr(d, 16)}, {vr(AC + 12, 4)}, {vr(p + 4, 4)}, {vr(d, 16)}"]]

    def expo(i, pdst):
        d = DB[i % 2]
        o = [f"v_exp_f32 v{d + r}, v{d + r}" for r in range(16)]
        o.append("s_nop 0")
        o += [f"v_cvt_pk_bf16_f32 v{pdst + q}, v{d + 2 * q}, v{d + 2 * q + 1}" for q in range(8)]
        return o

    def pv(n, psrc):
        b = KF + 8 * (n % 4)
        return [[f"v_mfma_f32_32x32x16_bf16 {vr(OA, 16)}, {vr(b + 4 * u, 4)}, {vr(psrc + 4 * u, 4)}, {vr(OA, 16)}"] for u in range(2)]

    a("s_nop 1")
    for g in scale(0):
        a(g[0])
    a("s_nop 7")
    a("s_nop 3")
    pend = []
    for i in range(8):
        pdst = PA if i % 2 == 0 else PBb
        if i == 0:
            pdst = PA
        elif i == 1:
            pdst = PA
        else:
            pdst = PBb if i % 2 == 0 else PA
        val = expo(i, pdst)
        if i == 0:
            for q in range(8):
                val.append(f"v_and_b32 v{PBb + q}, v{PA + q}, v{MPK + q}")
                val.append(f"v_bfi_b32 v{PC + q}, v{MPK + q}, 0, v{PA + q}")
        extra = (scale(i + 1) if i + 1 < 8 else []) + pend
        emit_inter(val, extra, start=1, step=2 if len(extra) > 6 else 3)
        if i == 0:
            p0, p1 = pv(0, PBb), pv(1, PC)
            pend = [["s_waitcnt lgkmcnt(4)"] + p0[0], p0[1], p1[0], p1[1] + vread([4, 5])]
        else:
            n = i + 1
            issued = min(n + 3, 8)
            p0 = pv(n, pdst)
            pend = [[f"s_waitcnt lgkmcnt({2 * (issued - n)})"] + p0[0], p0[1] + (vread([n + 4]) if n + 4 <= 8 else [])]
    a("s_nop 1")
    for g in pend:
        for l in g:
            a(l)
    a("s_nop 7")
    a("s_nop 7")
    a(f"v_rcp_f32 v7, v{OA + 8}")
    a("s_nop 0")
    for r in range(8):
        a(f"v_mul_f32 v{OA + r}, v{OA + r}, v7")
    T = SBUF[2]
    for q in range(4):
        a(f"v_cvt_pk_bf16_f32 v{T + q}, v{OA + 2 * q}, v{OA + 2 * q + 1}")
    a(f"buffer_store_dwordx4 {vr(T, 4)}, v5, s[{SWS}:{SWS + 3}], s55 offen {STF}")
    a("s_sub_u32 s63, s52, 7")
    a.diag_end(1, 52 if DIAG == 1 else 63, "K2_END")
    a.label("K2_END")
    a("s_endpgm")
    return name, 256, 80


def gen_k3(a):
    name = "oproj_kernel"
    kernel_head(a, name)
    SW, SWS, SO = 12, 16, 20
    a("s_cmp_ge_u32 s2, 256")
    a("s_cbranch_scc1 K3_END")
    a.diag_begin()
    a("s_load_dwordx4 s[4:7], s[0:1], 16")
    a("s_load_dwordx2 s[8:9], s[0:1], 40")
    a("v_lshrrev_b32 v2, 6, v0")
    a("v_and_b32 v1, 63, v0")
    a("s_and_b32 s25, s2, 1")
    a("s_lshl_b32 s25, s25, 2")
    a("s_bfe_u32 s24, s2, 0x20003")
    a("s_add_u32 s25, s25, s24")
    a("v_readfirstlane_b32 s26, v2")
    a("s_bfe_u32 s24, s2, 0x20001")
    a("s_lshl_b32 s24, s24, 3")
    a("s_lshr_b32 s27, s2, 5")
    a("s_add_u32 s24, s24, s27")
    a("s_cmp_ge_u32 s26, 4")
    a("s_cbranch_scc1 K3_LOADER")
    a("v_and_b32 v3, 31, v1")
    a("v_lshrrev_b32 v4, 5, v1")
    a("s_and_b32 s27, s26, 1")
    a("s_lshr_b32 s28, s26, 1")
    a("v_lshlrev_b32 v11, 5, v3")
    a("v_lshl_add_u32 v11, v4, 4, v11")
    a("s_lshl_b32 s29, s27, 15")
    a("v_add_u32 v11, s29, v11")
    a("v_lshrrev_b32 v8, 2, v1")
    a("v_and_b32 v8, 3, v8")
    a("v_lshrrev_b32 v9, 1, v8")
    a("v_xor_b32 v9, s28, v9")
    a("v_lshlrev_b32 v9, 6, v9")
    a("v_lshl_add_u32 v8, v4, 2, v8")
    a("v_lshl_add_u32 v8, v8, 7, v9")
    a("v_lshrrev_b32 v9, 4, v1")
    a("v_and_b32 v9, 1, v9")
    a("v_lshl_add_u32 v8, v9, 5, v8")
    a("v_and_b32 v9, 1, v1")
    a("v_lshl_add_u32 v8, v9, 4, v8")
    a("v_lshrrev_b32 v9, 1, v1")
    a("v_and_b32 v9, 1, v9")
    a("v_lshl_add_u32 v8, v9, 3, v8")
    a("v_add_u32 v8, 0x10000, v8")
    a("v_lshlrev_b32 v10, 10, v3")
    a("v_lshl_add_u32 v10, v4, 4, v10")
    a("s_lshl_b32 s31, s24, 16")
    a("s_lshl_b32 s32, s27, 15")
    a("s_add_u32 s31, s31, s32")
    a("s_lshl_b32 s32, s25, 7")
    a("s_add_u32 s31, s31, s32")
    a("s_lshl_b32 s32, s28, 6")
    a("s_add_u32 s31, s31, s32")
    ACC = 16
    FR = 32
    for r in range(16):
        a(f"v_mov_b32 v{ACC + r}, 0")
    a("s_waitcnt lgkmcnt(0)")
    srd(a, SO, 6, 2048 * 512 * 2)
    if TOUCH:
        a(f"buffer_load_dword v17, v10, s[{SO}:{SO + 3}], s31 offen")
        a("s_waitcnt vmcnt(0)")
        a("v_mov_b32 v17, 0")

    def reads(s):
        f = FR + (s % 4) * 8
        a(f"ds_read_b128 {vr(f, 4)}, v11 offset:{s * 1024}")
        a(f"ds_read_b64_tr_b16 {vr(f + 4, 2)}, v8 offset:{s * 2048}")
        a(f"ds_read_b64_tr_b16 {vr(f + 6, 2)}, v8 offset:{s * 2048 + 1024}")

    NPH = 8
    SP = 32 // NPH
    for j in range(NPH):
        a("s_barrier")
        if j in (0, NPH - 1):
            a.stamp()
        pre = min(3, SP)
        for s in range(SP * j, SP * j + pre):
            reads(s)
        for s in range(SP * j, SP * j + SP):
            if s + 3 < SP * j + SP:
                reads(s + 3)
                a("s_waitcnt lgkmcnt(9)")
            else:
                a(f"s_waitcnt lgkmcnt({3 * (SP * j + SP - 1 - s)})")
            f = FR + (s % 4) * 8
            a(f"v_mfma_f32_32x32x16_bf16 {vr(ACC, 16)}, {vr(f + 4, 4)}, {vr(f, 4)}, {vr(ACC, 16)}")
    STG = 131072
    a("s_lshl_b32 s32, s27, 5")
    a("v_add_u32 v12, s32, v3")
    a("v_mul_u32_u24 v12, 144, v12")
    a("v_lshl_add_u32 v12, v4, 4, v12")
    a("s_lshl_b32 s32, s28, 6")
    a(f"s_add_u32 s32, s32, {STG}")
    a("v_add_u32 v12, s32, v12")
    a("v_lshrrev_b32 v13, 3, v1")
    a("s_lshl_b32 s32, s26, 4")
    a("v_add_u32 v13, s32, v13")
    a("v_and_b32 v14, 7, v1")
    a("v_lshlrev_b32 v15, 10, v13")
    a("v_lshl_add_u32 v15, v14, 4, v15")
    a("v_mul_u32_u24 v13, 144, v13")
    a("v_lshl_add_u32 v13, v14, 4, v13")
    a(f"v_add_u32 v13, {STG}, v13")
    a("s_lshl_b32 s31, s24, 16")
    a("s_lshl_b32 s32, s25, 7")
    a("s_add_u32 s31, s31, s32")
    T = 32
    for u in range(2):
        for q in range(4):
            a(f"v_cvt_pk_bf16_f32 v{T + 4 * u + q}, v{ACC + 8 * u + 2 * q}, v{ACC + 8 * u + 2 * q + 1}")
        a(f"ds_write_b128 v12, {vr(T + 4 * u, 4)} offset:{u * 32}")
    a("s_waitcnt lgkmcnt(0)")
    a("s_barrier")
    for u in range(2):
        a(f"ds_read_b128 {vr(T + 8 + 4 * u, 4)}, v13 offset:{u * 8 * 144}")
    for u in range(2):
        a(f"s_waitcnt lgkmcnt({1 - u})")
        a(f"buffer_store_dwordx4 {vr(T + 8 + 4 * u, 4)}, v15, s[{SO}:{SO + 3}], s31 offen offset:0 {STF3}" if u == 0 else
          f"buffer_store_dwordx4 {vr(T + 8 + 4 * u, 4)}, v16, s[{SO}:{SO + 3}], s31 offen {STF3}")
        if u == 0:
            a("v_add_u32 v16, 8192, v15")
    a.diag_end(2, 26, "K3_END")
    a("s_endpgm")
    a.label("K3_LOADER")
    a("s_sub_u32 s26, s26, 4")
    a("v_lshlrev_b32 v5, 4, v1")
    a("v_lshrrev_b32 v6, 4, v1")
    a("v_and_b32 v6, 1, v6")
    a("v_lshlrev_b32 v6, 2, v6")
    a("v_and_b32 v7, 7, v1")
    a("v_xor_b32 v6, v6, v7")
    a("v_lshlrev_b32 v6, 4, v6")
    a("v_lshrrev_b32 v7, 3, v1")
    a("v_lshl_add_u32 v6, v7, 10, v6")
    a("s_and_b32 s27, s26, 1")
    a("s_lshr_b32 s28, s26, 1")
    a("s_lshl_b32 s33, s24, 16")
    a("s_lshl_b32 s34, s27, 15")
    a("s_add_u32 s33, s33, s34")
    a("s_lshl_b32 s35, s28, 11")
    a("s_add_u32 s33, s33, s35")
    a(f"s_add_u32 s33, s33, {WS_O}")
    a("s_add_u32 s34, s34, s35")
    a("s_lshl_b32 s35, s26, 14")
    a("s_lshl_b32 s36, s25, 7")
    a("s_add_u32 s35, s35, s36")
    a("s_lshl_b32 s36, s26, 11")
    a("s_add_u32 s36, s36, 0x10000")
    a("s_waitcnt lgkmcnt(0)")
    srd(a, SW, 4, 512 * 512 * 2)
    srd(a, SWS, 8, WS_BYTES)
    a("s_lshr_b32 s39, s2, 3")

    def dma3(j):
        a(f"s_add_u32 s40, s39, {j}")
        a("s_and_b32 s40, s40, 7")
        a("s_lshl_b32 s41, s40, 12")
        a("s_add_u32 s41, s41, s33")
        a("s_lshl_b32 s42, s40, 16")
        a("s_add_u32 s42, s42, s35")
        for i in range(2):
            a(f"s_add_u32 s37, s41, {i * 1024}")
            a(f"s_add_u32 m0, s34, {j * 4096 + i * 1024}")
            a("s_nop 0")
            a(f"buffer_load_dwordx4 v5, s[{SWS}:{SWS + 3}], s37 offen lds")
        for i in range(2):
            a(f"s_add_u32 s37, s42, {i * 8192}")
            a(f"s_add_u32 m0, s36, {j * 8192 + i * 1024}")
            a("s_nop 0")
            a(f"buffer_load_dwordx4 v6, s[{SW}:{SW + 3}], s37 offen lds")

    LA3 = int(os.environ.get("LA3", "4"))
    for j in range(LA3):
        dma3(j)
    for j in range(NPH):
        issued = min(j + LA3, NPH)
        a(f"s_waitcnt vmcnt({4 * (issued - j - 1)})")
        a("s_barrier")
        if j + LA3 < NPH:
            dma3(j + LA3)
    a.label("K3_END")
    a("s_endpgm")
    return name, 64, 48


def main():
    a = Asm()
    hdr = open("standalone__sliding_block__prompt.s.ref").read().split("\n")
    for line in hdr:
        if line.startswith("; @launch") or not line.startswith(";"):
            break
        a.raw(line)
    a.raw("; @launch kernel=qkv_kernel grid=(256,1,1) block=(512,1,1) lds=131072")
    a.raw("; @launch kernel=attn_kernel grid=(256,1,1) block=(512,1,1) lds=33280")
    a.raw("; @launch kernel=oproj_kernel grid=(256,1,1) block=(512,1,1) lds=140288")
    a.raw('.amdgcn_target "amdgcn-amd-amdhsa--gfx950"')
    a.raw(".text")
    ks = [gen_k1(a), gen_k2(a), gen_k3(a)]
    a.raw('.section .rodata,"a"')
    for name, v, s in ks:
        kd(a, name, v, s)
    txt = a.text()
    if int(os.environ.get("LOADER_FIRST", "1")):
        for k, end in (("K1", "K1_END"), ("K3", "K3_END")):
            br = f"    s_cmp_ge_u32 s26, 4\n    s_cbranch_scc1 {k}_LOADER\n"
            i0 = txt.index(br)
            i1 = txt.index(f"{k}_LOADER:\n")
            i2 = txt.index(f"{end}:\n")
            comp = txt[i0 + len(br):i1]
            load = txt[i1 + len(f"{k}_LOADER:\n"):i2]
            txt = (txt[:i0] + f"    s_cmp_lt_u32 s26, 4\n    s_cbranch_scc1 {k}_COMPUTE\n" + load + "    s_endpgm\n"
                   + f"{k}_COMPUTE:\n" + comp + txt[i2:])
    open(OUT, "w").write(txt)


main()
```
